```python
import torch

def _softmax(x, axis=-1):
    return torch.softmax(x, dim=axis)
def _gelu(x):
    return torch.nn.functional.gelu(x, approximate="tanh")
def _silu(x):
    return torch.nn.functional.silu(x)
def _sigmoid(x):
    return torch.sigmoid(x)
def _layernorm(x, axis=-1, eps=1e-5):
    m = x.mean(dim=axis, keepdim=True)
    v = x.var(dim=axis, keepdim=True, unbiased=False)
    return (x - m) / torch.sqrt(v + eps)
def _scatter_add(tgt, idx, src, axis=0):
    return tgt.clone().index_add_(axis, idx, src)
def _segment_sum(src, seg, n):
    out = torch.zeros((n,) + src.shape[1:], dtype=src.dtype)
    return out.index_add_(0, seg, src)
def _pad(x, pw):
    flat = tuple(v for pair in reversed(pw) for v in pair)
    return torch.nn.functional.pad(x, flat)

kernel_name = 'parallel_sum__spectral_fnet__geglu_ffn__prompt'

def setup_inputs():

    _w = (lambda a: (lambda t: t.to(torch.bfloat16) if t.is_floating_point() else t)(torch.as_tensor(a)))
    def _A_setup():
        B, S, D = 1, 2048, 512
        ns = torch.arange(S)[:, None] * torch.arange(S)[None, :]
        nd = torch.arange(D)[:, None] * torch.arange(D)[None, :]
        Ws_re = torch.cos(-2.0 * torch.pi * ns / S).to(float)
        Ws_im = torch.sin(-2.0 * torch.pi * ns / S).to(float)
        Wd_re = torch.cos(-2.0 * torch.pi * nd / D).to(float)
        Wd_im = torch.sin(-2.0 * torch.pi * nd / D).to(float)
        return {
            "x": _w((lambda *s: torch.randn(*s, dtype=torch.bfloat16) * 0.05)(B, S, D)),
            "dft_seq_re": _w(Ws_re),
            "dft_seq_im": _w(Ws_im),
            "dft_hid_re": _w(Wd_re),
            "dft_hid_im": _w(Wd_im),
        }
    _A_in = _A_setup()

    def _B_setup():
        B, S, D, F = 1, 2048, 512, 1376
        return {
            "x": _w((lambda *s: torch.randn(*s, dtype=torch.bfloat16) * 0.05)(B, S, D)),
            "w_gate": _w((lambda *s: torch.randn(*s, dtype=torch.bfloat16) * 0.2)(D, F)),
            "w_up": _w((lambda *s: torch.randn(*s, dtype=torch.bfloat16) * 0.2)(D, F)),
            "w_down": _w((lambda *s: torch.randn(*s, dtype=torch.bfloat16) * 0.2)(F, D)),
        }
    _B_in = _B_setup()

    return {
        "A_x": _A_in["x"],
        "A_dft_seq_re": _A_in["dft_seq_re"],
        "A_dft_seq_im": _A_in["dft_seq_im"],
        "A_dft_hid_re": _A_in["dft_hid_re"],
        "A_dft_hid_im": _A_in["dft_hid_im"],
        "B_x": _B_in["x"],
        "B_w_gate": _B_in["w_gate"],
        "B_w_up": _B_in["w_up"],
        "B_w_down": _B_in["w_down"],
    }

def reference(A_x, A_dft_seq_re, A_dft_seq_im, A_dft_hid_re, A_dft_hid_im, B_x, B_w_gate, B_w_up, B_w_down):
    def _A_ref(x, dft_seq_re, dft_seq_im, dft_hid_re, dft_hid_im):
        a = torch.einsum("bsd,ed->bse", x, dft_hid_re)
        b = torch.einsum("bsd,ed->bse", x, dft_hid_im)
        y = torch.einsum("ts,bse->bte", dft_seq_re, a) - torch.einsum("ts,bse->bte", dft_seq_im, b)
        return y

    def _B_ref(x, w_gate, w_up, w_down):
        return (_gelu(x @ w_gate) * (x @ w_up)) @ w_down

    x = A_x
    xn = _layernorm(x, axis=-1)
    return x + _A_ref(xn, A_dft_seq_re, A_dft_seq_im, A_dft_hid_re, A_dft_hid_im) + _B_ref(xn, B_w_gate, B_w_up, B_w_down)
```

```python
import struct

NAME = "parallel_sum__spectral_fnet__geglu_ffn__prompt"
S_, D_, F_ = 2048, 512, 1376
FP = 1408
KZ = 2432
LDZ = KZ * 2
XN_OFF = 0x000000
XNT_OFF = 0x200000
WGU_OFF = 0x400000
V_OFF = 0x700000
Z_OFF = 0xA00000
XN_SZ = S_ * D_ * 2
WGU_SZ = 2 * FP * D_ * 2
V_SZ = D_ * LDZ
Z_SZ = S_ * LDZ

out = []


def E(s=""):
    out.append(s)


def f32(x):
    return "0x%08x" % struct.unpack("<I", struct.pack("<f", x))[0]


def srd(reg, lo, hi, size):
    E(f"s_mov_b32 s{reg}, {lo}")
    E(f"s_and_b32 s{reg+1}, {hi}, 0xffff")
    E(f"s_mov_b32 s{reg+2}, {size}")
    E(f"s_mov_b32 s{reg+3}, 0x00020000")


def add64(dlo, slo, shi, off):
    E(f"s_add_u32 s{dlo}, {slo}, {off}")
    E(f"s_addc_u32 s{dlo+1}, {shi}, 0")


NPREP = 146


def gen_prep():
    E(".p2align 8")
    E(".globl prep_kernel")
    E(".type prep_kernel,@function")
    E("prep_kernel:")
    E(f"s_cmp_ge_u32 s2, {NPREP}")
    E("s_cbranch_scc1 L_prep_done")
    E("s_load_dwordx2 s[4:5], s[0:1], 88")
    E("v_and_b32 v1, 63, v0")
    E("v_lshrrev_b32 v2, 6, v0")
    E("s_nop 0")
    E("v_readfirstlane_b32 s3, v2")
    E("s_cmp_lt_u32 s2, 64")
    E("s_cbranch_scc1 L_prep_ln")
    E("s_cmp_lt_u32 s2, 108")
    E("s_cbranch_scc1 L_prep_wgu")
    E("s_cmp_lt_u32 s2, 130")
    E("s_cbranch_scc1 L_prep_wdn")
    E("s_branch L_prep_copy")

    E("L_prep_ln:")
    E("s_load_dwordx2 s[6:7], s[0:1], 0")
    E("s_waitcnt lgkmcnt(0)")
    srd(8, "s6", "s7", XN_SZ)
    add64(24, "s4", "s5", XN_OFF)
    srd(12, "s24", "s25", XN_SZ)
    add64(24, "s4", "s5", XNT_OFF)
    srd(16, "s24", "s25", XN_SZ)
    E("s_lshl_b32 s20, s2, 15")
    E("s_lshl_b32 s22, s3, 13")
    E("s_add_u32 s20, s20, s22")
    E("s_add_u32 s21, s20, 4096")
    E("v_lshlrev_b32 v3, 4, v1")
    P0 = 16
    X0 = 64
    for i in range(8):
        so = "s20" if i < 4 else "s21"
        E(f"buffer_load_dwordx4 v[{P0+4*i}:{P0+4*i+3}], v3, s[8:11], {so} offen offset:{(i%4)*1024}")
    for i in range(8):
        E(f"s_waitcnt vmcnt({7-i})")
        for j in range(4):
            E(f"v_lshlrev_b32 v{X0+8*i+2*j}, 16, v{P0+4*i+j}")
            E(f"v_and_b32 v{X0+8*i+2*j+1}, 0xffff0000, v{P0+4*i+j}")
    R0 = 48
    M0r = 128
    T0 = 136
    U0 = 144
    W0 = 152

    def wave_reduce(base):
        for ctl in ["row_shr:1 row_mask:0xf bank_mask:0xf bound_ctrl:0",
                    "row_shr:2 row_mask:0xf bank_mask:0xf bound_ctrl:0",
                    "row_shr:4 row_mask:0xf bank_mask:0xf bound_ctrl:0",
                    "row_shr:8 row_mask:0xf bank_mask:0xf bound_ctrl:0",
                    "row_bcast:15 row_mask:0xa bank_mask:0xf",
                    "row_bcast:31 row_mask:0xc bank_mask:0xf"]:
            for i in range(8):
                E(f"v_add_f32_dpp v{base+i}, v{base+i}, v{base+i} {ctl}")
        for i in range(8):
            E(f"v_readlane_b32 s{32+i}, v{base+i}, 63")
        E("s_nop 1")

    for i in range(8):
        E(f"v_add_f32 v{R0+i}, v{X0+8*i}, v{X0+8*i+1}")
    for j in range(2, 8):
        for i in range(8):
            E(f"v_add_f32 v{R0+i}, v{R0+i}, v{X0+8*i+j}")
    wave_reduce(R0)
    for i in range(8):
        E(f"v_mov_b32 v{M0r+i}, s{32+i}")
    for i in range(8):
        E(f"v_mul_f32 v{M0r+i}, {f32(1.0/512)}, v{M0r+i}")
    for j in range(8):
        for i in range(8):
            E(f"v_sub_f32 v{T0+i}, v{X0+8*i+j}, v{M0r+i}")
        for i in range(8):
            if j == 0:
                E(f"v_mul_f32 v{R0+i}, v{T0+i}, v{T0+i}")
            else:
                E(f"v_fmac_f32 v{R0+i}, v{T0+i}, v{T0+i}")
    wave_reduce(R0)
    for i in range(8):
        E(f"v_mov_b32 v{T0+i}, s{32+i}")
    for i in range(8):
        E(f"v_mul_f32 v{T0+i}, {f32(1.0/512)}, v{T0+i}")
    for i in range(8):
        E(f"v_cvt_pk_bf16_f32 v{U0+i}, v{T0+i}, v{M0r+i}")
    for i in range(8):
        E(f"v_lshlrev_b32 v{T0+i}, 16, v{U0+i}")
        E(f"v_and_b32 v{M0r+i}, 0xffff0000, v{U0+i}")
    for i in range(8):
        E(f"v_add_f32 v{T0+i}, {f32(1e-5)}, v{T0+i}")
    for i in range(8):
        E(f"v_cvt_pk_bf16_f32 v{U0+i}, v{T0+i}, v{T0+i}")
    for i in range(8):
        E(f"v_lshlrev_b32 v{T0+i}, 16, v{U0+i}")
    for i in range(8):
        E(f"v_sqrt_f32 v{T0+i}, v{T0+i}")
    E("s_nop 0")
    for i in range(8):
        E(f"v_cvt_pk_bf16_f32 v{U0+i}, v{T0+i}, v{T0+i}")
    for i in range(8):
        E(f"v_lshlrev_b32 v{T0+i}, 16, v{U0+i}")
    for i in range(8):
        E(f"v_rcp_f32 v{W0+i}, v{T0+i}")
    E("s_nop 0")
    for i in range(8):
        for j in range(0, 8, 2):
            a, b = X0 + 8 * i + j, X0 + 8 * i + j + 1
            E(f"v_sub_f32 v{a}, v{a}, v{M0r+i}")
            E(f"v_sub_f32 v{b}, v{b}, v{M0r+i}")
            E(f"v_cvt_pk_bf16_f32 v4, v{a}, v{b}")
            E(f"v_lshlrev_b32 v{a}, 16, v4")
            E(f"v_and_b32 v{b}, 0xffff0000, v4")
            E(f"v_mul_f32 v5, v{a}, v{W0+i}")
            E(f"v_mul_f32 v6, v{b}, v{W0+i}")
            E(f"v_fma_f32 v7, -v5, v{T0+i}, v{a}")
            E(f"v_fma_f32 v8, -v6, v{T0+i}, v{b}")
            E(f"v_fma_f32 v5, v7, v{W0+i}, v5")
            E(f"v_fma_f32 v6, v8, v{W0+i}, v6")
            E(f"v_cvt_pk_bf16_f32 v{P0+4*i+j//2}, v5, v6")
    E("v_lshlrev_b32 v9, 13, v2")
    E("v_add_u32 v9, v9, v3")
    for i in range(8):
        so = "s20" if i < 4 else "s21"
        E(f"buffer_store_dwordx4 v[{P0+4*i}:{P0+4*i+3}], v3, s[12:15], {so} offen offset:{(i%4)*1024}")
        E(f"ds_write_b128 v9, v[{P0+4*i}:{P0+4*i+3}] offset:{i*1024}")
    E("s_waitcnt lgkmcnt(0)")
    E("s_barrier")
    E("v_lshlrev_b32 v10, 1, v0")
    Q0 = 64
    for dd in range(2):
        for c in range(4):
            for j in range(8):
                r = Q0 + (dd * 4 + c) * 8 + j
                E(f"ds_read_u16 v{r}, v10 offset:{(8*c+j)*1024 + dd*512}")
    E("v_lshlrev_b32 v11, 12, v0")
    E("s_lshl_b32 s20, s2, 6")
    E("s_add_u32 s21, s20, 0x100000")
    E("s_waitcnt lgkmcnt(0)")
    for i in range(32):
        E(f"v_lshl_or_b32 v{Q0+i}, v{Q0+2*i+1}, 16, v{Q0+2*i}")
    for dd in range(2):
        for c in range(4):
            r = Q0 + (dd * 4 + c) * 4
            so = "s20" if dd == 0 else "s21"
            E(f"buffer_store_dwordx4 v[{r}:{r+3}], v11, s[16:19], {so} offen offset:{16*c}")
    E("s_endpgm")

    E("L_prep_wgu:")
    E("s_load_dwordx2 s[6:7], s[0:1], 48")
    E("s_load_dwordx2 s[26:27], s[0:1], 56")
    E("s_sub_u32 s20, s2, 64")
    E("s_cmp_ge_u32 s20, 22")
    E("s_cselect_b32 s21, 1, 0")
    E("s_mul_i32 s22, s21, 22")
    E("s_sub_u32 s20, s20, s22")
    E("s_waitcnt lgkmcnt(0)")
    E("s_cmp_eq_u32 s21, 1")
    E("s_cselect_b32 s6, s26, s6")
    E("s_cselect_b32 s7, s27, s7")
    srd(8, "s6", "s7", D_ * F_ * 2)
    add64(24, "s4", "s5", WGU_OFF)
    srd(12, "s24", "s25", WGU_SZ)
    E("s_lshl_b32 s22, s20, 6")
    E("v_add_u32 v3, s22, v1")
    E("v_lshlrev_b32 v4, 1, v3")
    E(f"v_cmp_gt_u32 vcc, {F_}, v3")
    E("v_mov_b32 v5, 0x7ff00000")
    E("s_nop 1")
    E("v_cndmask_b32 v4, v5, v4, vcc")
    E(f"s_mul_i32 s23, s3, {128*F_*2}")
    for dd in range(0, 128, 2):
        r = 16 + dd
        E(f"buffer_load_ushort v{r}, v4, s[8:11], s23 offen")
        E(f"buffer_load_ushort v{r+1}, v4, s[8:11], s23 offen offset:{F_*2}")
        E(f"s_add_u32 s23, s23, {2*F_*2}")
    E("v_lshrrev_b32 v5, 5, v3")
    E("v_lshlrev_b32 v5, 6, v5")
    E("v_and_b32 v6, 31, v3")
    E("v_add_u32 v5, v5, v6")
    E("s_lshl_b32 s22, s21, 5")
    E("v_add_u32 v5, s22, v5")
    E("v_lshlrev_b32 v5, 10, v5")
    E("s_lshl_b32 s22, s3, 8")
    E("s_waitcnt vmcnt(0)")
    for i in range(64):
        E(f"v_lshl_or_b32 v{16+i}, v{16+2*i+1}, 16, v{16+2*i}")
    for i in range(16):
        E(f"buffer_store_dwordx4 v[{16+4*i}:{16+4*i+3}], v5, s[12:15], s22 offen offset:{16*i}")
    E("s_endpgm")

    E("L_prep_wdn:")
    E("s_load_dwordx2 s[6:7], s[0:1], 64")
    E("s_sub_u32 s20, s2, 108")
    E("s_lshl_b32 s20, s20, 2")
    E("s_add_u32 s20, s20, s3")
    E("s_and_b32 s21, s20, 7")
    E("s_lshr_b32 s22, s20, 3")
    E("s_waitcnt lgkmcnt(0)")
    srd(8, "s6", "s7", F_ * D_ * 2)
    add64(24, "s4", "s5", V_OFF)
    srd(12, "s24", "s25", V_SZ)
    E("s_lshl_b32 s23, s21, 6")
    E("v_add_u32 v3, s23, v1")
    E("v_lshlrev_b32 v4, 1, v3")
    E("s_lshl_b32 s23, s22, 17")
    for ff in range(0, 128, 4):
        r = 16 + ff
        E(f"buffer_load_ushort v{r}, v4, s[8:11], s23 offen")
        E(f"buffer_load_ushort v{r+1}, v4, s[8:11], s23 offen offset:1024")
        E(f"buffer_load_ushort v{r+2}, v4, s[8:11], s23 offen offset:2048")
        E(f"buffer_load_ushort v{r+3}, v4, s[8:11], s23 offen offset:3072")
        E("s_add_u32 s23, s23, 4096")
    E(f"s_mov_b32 s26, {LDZ}")
    E("v_mul_lo_u32 v5, v3, s26")
    E("s_lshl_b32 s22, s22, 8")
    E("s_add_u32 s22, s22, 2048")
    E("s_waitcnt vmcnt(0)")
    for i in range(64):
        E(f"v_lshl_or_b32 v{16+i}, v{16+2*i+1}, 16, v{16+2*i}")
    for i in range(16):
        E(f"buffer_store_dwordx4 v[{16+4*i}:{16+4*i+3}], v5, s[12:15], s22 offen offset:{16*i}")
    E("s_endpgm")

    E("L_prep_copy:")
    E("s_load_dwordx2 s[6:7], s[0:1], 24")
    E("s_load_dwordx2 s[26:27], s[0:1], 32")
    E("s_sub_u32 s20, s2, 130")
    E("s_lshr_b32 s21, s20, 3")
    E("s_and_b32 s20, s20, 7")
    E("s_waitcnt lgkmcnt(0)")
    E("s_cmp_eq_u32 s21, 1")
    E("s_cselect_b32 s6, s26, s6")
    E("s_cselect_b32 s7, s27, s7")
    E("s_cselect_b32 s28, 0x80008000, 0")
    srd(8, "s6", "s7", D_ * D_ * 2)
    add64(24, "s4", "s5", V_OFF)
    srd(12, "s24", "s25", V_SZ)
    E("s_lshl_b32 s22, s20, 6")
    E("s_add_u32 s22, s22, s3")
    E("s_lshl_b32 s23, s22, 10")
    E(f"s_mul_i32 s24, s22, {LDZ}")
    E("s_lshl_b32 s25, s21, 10")
    E("s_add_u32 s24, s24, s25")
    E("v_lshlrev_b32 v3, 4, v1")
    for i in range(16):
        E(f"buffer_load_dwordx4 v[{16+4*i}:{16+4*i+3}], v3, s[8:11], s23 offen")
        E("s_add_u32 s23, s23, 4096")
    for i in range(16):
        E(f"s_waitcnt vmcnt({15-i if i < 15 else 0})" if False else f"s_waitcnt vmcnt(15)")
        for j in range(4):
            E(f"v_xor_b32 v{16+4*i+j}, s28, v{16+4*i+j}")
        E(f"buffer_store_dwordx4 v[{16+4*i}:{16+4*i+3}], v3, s[12:15], s24 offen")
        E(f"s_add_u32 s24, s24, {4*LDZ}")
    E("L_prep_done:")
    E("s_endpgm")


STAGE = 32768
NS = 4
VOFF = 10
VA = 16
VB = 24
VF = 32
ACC = 64


def gemm_setup(ld_sgpr, wrowA, wrowB):
    E("v_lshrrev_b32 v2, 3, v1")
    E("v_lshrrev_b32 v3, 4, v1")
    E("v_and_b32 v4, 7, v1")
    for i in range(4):
        E(f"v_add_u32 v5, {8*i}, v2")
        E(f"v_mul_lo_u32 v5, v5, {ld_sgpr}")
        E(f"v_add_u32 v6, {4*i}, v3")
        E("v_and_b32 v6, 7, v6")
        E("v_xor_b32 v6, v6, v4")
        E("v_lshlrev_b32 v6, 4, v6")
        E("v_add_u32 v5, v5, v6")
        if i:
            E(f"v_subrev_u32 v5, {i*1024}, v5")
        E(f"v_mov_b32 v{VOFF+i}, v5")
    E("v_and_b32 v2, 31, v1")
    E("v_lshrrev_b32 v3, 5, v1")
    E("v_lshrrev_b32 v4, 1, v2")
    E("v_and_b32 v4, 7, v4")
    E("v_xor_b32 v4, v4, v3")
    E("v_lshlrev_b32 v4, 4, v4")
    E("v_lshlrev_b32 v5, 7, v2")
    E("v_add_u32 v4, v4, v5")
    E(f"s_lshl_b32 s30, {wrowA}, 7")
    E(f"s_lshl_b32 s31, {wrowB}, 7")
    for j in range(4):
        E(f"v_xor_b32 v5, {j*32}, v4")
        for half in range(2):
            E(f"v_add_u32 v{VA+half*4+j}, s30, v5")
            E(f"v_add_u32 v{VB+half*4+j}, s31, v5")
            if half == 0:
                E("v_add_u32 v5, 0x10000, v5")


def gemm_loop(tag, nsteps, BM, BN, KP, groups, kadv, soffs, PD):
    L = 4 * len(groups)
    nsub = 4 * KP
    nset = PD + 1
    fsz = (BM + BN) * 4
    panelA = 16384 // KP

    def issue(slot):
        for (sr, so, mb, mi) in groups:
            E(f"s_add_u32 m0, {mb}, {slot*STAGE + mi}")
            E("s_nop 0")
            for i in range(4):
                E(f"buffer_load_dwordx4 v{VOFF+i}, {sr}, {so} offen offset:{i*1024} lds")

    def advance():
        for so in soffs:
            E(f"s_add_u32 {so}, {so}, {kadv}")

    def reads(slot, sub):
        st = sub % nset
        p, j = sub // 4, sub % 4
        half = slot // 2
        base = (slot % 2) * STAGE
        for bm in range(BM):
            r = VF + st * fsz + bm * 4
            E(f"ds_read_b128 v[{r}:{r+3}], v{VA+half*4+j} offset:{base + p*panelA + bm*4096}")
        for bn in range(BN):
            r = VF + st * fsz + BM * 4 + bn * 4
            E(f"ds_read_b128 v[{r}:{r+3}], v{VB+half*4+j} offset:{base + 16384 + p*panelA + bn*4096}")

    def mfmas(sub):
        st = sub % nset
        for bm in range(BM):
            for bn in range(BN):
                a = VF + st * fsz + bm * 4
                b = VF + st * fsz + BM * 4 + bn * 4
                c = ACC + (bm * BN + bn) * 16
                E(f"v_mfma_f32_32x32x16_bf16 v[{c}:{c+15}], v[{a}:{a+3}], v[{b}:{b+3}], v[{c}:{c+15}]")

    def step(k_slot, do_issue, vm):
        E(f"s_waitcnt vmcnt({vm})")
        E("s_barrier")
        nr = BM + BN
        for s in range(min(PD, nsub)):
            reads(k_slot, s)
        if do_issue:
            issue((k_slot + NS - 1) % NS)
            advance()
        for s in range(nsub):
            if s + PD < nsub:
                reads(k_slot, s + PD)
                E(f"s_waitcnt lgkmcnt({PD*nr})")
            else:
                E(f"s_waitcnt lgkmcnt({(nsub-1-s)*nr})")
            mfmas(s)

    for r in range(ACC, ACC + BM * BN * 16):
        E(f"v_mov_b32 v{r}, 0")
    for st in range(NS - 1):
        issue(st)
        advance()
    ngroups = (nsteps - NS + 1) // NS
    if ngroups > 0:
        E(f"s_mov_b32 s26, {ngroups}")
        E(f"L_{tag}_loop:")
        for s in range(NS):
            step(s, True, (NS - 2) * L)
        E("s_sub_u32 s26, s26, 1")
        E("s_cmp_lg_u32 s26, 0")
        E(f"s_cbranch_scc1 L_{tag}_loop")
    for k in range(ngroups * NS, nsteps):
        do_issue = (k + NS - 1) < nsteps
        vm = (min(k + NS - 2, nsteps - 1) - k) * L
        step(k % NS, do_issue, vm)
    E("s_nop 15")
    E("s_nop 3")


NBIG = 128
NSMALL = 16 * 22
NST1 = NBIG + NSMALL


def gen_stage1():
    E(".p2align 8")
    E(".globl stage1_kernel")
    E(".type stage1_kernel,@function")
    E("stage1_kernel:")
    E(f"s_cmp_ge_u32 s2, {NST1}")
    E("s_cbranch_scc1 L_s1_done")
    E("s_load_dwordx2 s[4:5], s[0:1], 88")
    E("s_load_dwordx2 s[6:7], s[0:1], 8")
    E("s_load_dwordx2 s[32:33], s[0:1], 16")
    E("v_and_b32 v1, 63, v0")
    E("v_lshrrev_b32 v2, 6, v0")
    E("s_nop 0")
    E("v_readfirstlane_b32 s3, v2")
    E("s_nop 3")
    E("s_lshr_b32 s34, s3, 1")
    E("s_and_b32 s35, s3, 1")
    E("s_lshl_b32 s36, s34, 6")
    E("s_lshl_b32 s37, s35, 6")
    E("s_lshl_b32 s28, s3, 12")
    E("s_mov_b32 s24, 0")
    E("s_waitcnt lgkmcnt(0)")
    add64(38, "s4", "s5", Z_OFF)
    srd(16, "s38", "s39", Z_SZ)
    E(f"s_cmp_ge_u32 s2, {NBIG}")
    E("s_cbranch_scc1 L_s1_small")

    E("s_and_b32 s40, s2, 7")
    E("s_lshr_b32 s41, s2, 5")
    E("s_lshl_b32 s41, s41, 3")
    E("s_add_u32 s40, s40, s41")
    E("s_lshr_b32 s41, s2, 3")
    E("s_and_b32 s41, s41, 3")
    E("s_lshl_b32 s42, s41, 7")
    E("s_lshl_b32 s43, s3, 5")
    E("s_add_u32 s42, s42, s43")
    E("s_lshl_b32 s42, s42, 12")
    E(f"s_add_u32 s43, s42, {XNT_OFF}")
    add64(38, "s4", "s5", "s43")
    E(f"s_sub_u32 s43, {XN_SZ}, s42")
    srd(8, "s38", "s39", "s43")
    E("s_cmp_ge_u32 s40, 16")
    E("s_cselect_b32 s6, s32, s6")
    E("s_cselect_b32 s7, s33, s7")
    E("s_cselect_b32 s44, 512, 0")
    E("s_and_b32 s45, s40, 15")
    E("s_lshl_b32 s42, s45, 7")
    E("s_lshl_b32 s43, s3, 5")
    E("s_add_u32 s42, s42, s43")
    E("s_lshl_b32 s42, s42, 12")
    add64(38, "s6", "s7", "s42")
    E(f"s_sub_u32 s43, {S_*S_*2}, s42")
    srd(12, "s38", "s39", "s43")
    E("s_movk_i32 s29, 4096")
    gemm_setup("s29", "s36", "s37")
    groups = [("s[8:11]", "s24", "s28", 0), ("s[12:15]", "s24", "s28", 16384)]
    gemm_loop("s1big", 32, 2, 2, 1, groups, 128, ["s24"], 1)
    E("s_lshl_b32 s45, s45, 7")
    E("s_add_u32 s45, s45, s37")
    E(f"s_mul_i32 s45, s45, {LDZ}")
    E("s_lshl_b32 s41, s41, 7")
    E("s_add_u32 s44, s44, s41")
    E("s_add_u32 s44, s44, s36")
    E("s_lshl_b32 s44, s44, 1")
    E("s_add_u32 s45, s45, s44")
    E("v_and_b32 v2, 31, v1")
    E(f"s_movk_i32 s29, {LDZ}")
    E("v_mul_lo_u32 v2, v2, s29")
    E("v_lshrrev_b32 v3, 5, v1")
    E("v_lshlrev_b32 v3, 3, v3")
    E("v_add_u32 v2, v2, v3")
    E(f"v_add_u32 v3, {32*LDZ}, v2")
    T = 128
    n = 0
    for bm in range(2):
        for bn in range(2):
            c = ACC + (bm * 2 + bn) * 16
            for g in range(4):
                t = T + (n % 8) * 2
                n += 1
                E(f"v_cvt_pk_bf16_f32 v{t}, v{c+4*g}, v{c+4*g+1}")
                E(f"v_cvt_pk_bf16_f32 v{t+1}, v{c+4*g+2}, v{c+4*g+3}")
                E(f"buffer_store_dwordx2 v[{t}:{t+1}], v{2+bn}, s[16:19], s45 offen offset:{(bm*32+8*g)*2}")
    E("s_endpgm")

    E("L_s1_small:")
    E(f"s_sub_u32 s40, s2, {NBIG}")
    E(f"s_mov_b32 s41, {(2**32 + 21)//22 + 0}")
    E("s_mul_hi_u32 s41, s40, s41")
    E("s_mul_i32 s42, s41, 22")
    E("s_sub_u32 s40, s40, s42")
    E("s_lshl_b32 s42, s40, 7")
    E("s_lshl_b32 s43, s3, 5")
    E("s_add_u32 s42, s42, s43")
    E("s_lshl_b32 s42, s42, 10")
    E(f"s_add_u32 s43, s42, {WGU_OFF}")
    add64(38, "s4", "s5", "s43")
    E(f"s_sub_u32 s43, {WGU_SZ}, s42")
    srd(8, "s38", "s39", "s43")
    E("s_lshl_b32 s42, s41, 7")
    E("s_lshl_b32 s43, s3, 5")
    E("s_add_u32 s42, s42, s43")
    E("s_lshl_b32 s42, s42, 10")
    E(f"s_add_u32 s43, s42, {XN_OFF}")
    add64(38, "s4", "s5", "s43")
    E(f"s_sub_u32 s43, {XN_SZ}, s42")
    srd(12, "s38", "s39", "s43")
    E("s_movk_i32 s29, 1024")
    gemm_setup("s29", "s36", "s37")
    gemm_loop("s1small", 8, 2, 2, 1, groups, 128, ["s24"], 1)
    E("s_lshl_b32 s45, s41, 7")
    E("s_add_u32 s45, s45, s37")
    E(f"s_mul_i32 s45, s45, {LDZ}")
    E("s_lshl_b32 s44, s40, 1")
    E("s_add_u32 s44, s44, s34")
    E("s_lshl_b32 s44, s44, 6")
    E("s_add_u32 s45, s45, s44")
    E("s_add_u32 s45, s45, 2048")
    E("v_and_b32 v2, 31, v1")
    E(f"s_movk_i32 s29, {LDZ}")
    E("v_mul_lo_u32 v2, v2, s29")
    E("v_lshrrev_b32 v3, 5, v1")
    E("v_lshlrev_b32 v3, 3, v3")
    E("v_add_u32 v2, v2, v3")
    E(f"v_add_u32 v3, {32*LDZ}, v2")
    CK = -2.0 * 0.7978845608028654 * 1.4426950408889634
    E(f"s_mov_b32 s46, {f32(0.044715)}")
    E(f"s_mov_b32 s47, {f32(CK)}")
    for bn in range(2):
        cg = ACC + (0 * 2 + bn) * 16
        cu = ACC + (1 * 2 + bn) * 16
        for g in range(4):
            G = 128
            E(f"v_cvt_pk_bf16_f32 v144, v{cg+4*g}, v{cg+4*g+1}")
            E(f"v_cvt_pk_bf16_f32 v145, v{cg+4*g+2}, v{cg+4*g+3}")
            E(f"v_cvt_pk_bf16_f32 v146, v{cu+4*g}, v{cu+4*g+1}")
            E(f"v_cvt_pk_bf16_f32 v147, v{cu+4*g+2}, v{cu+4*g+3}")
            E(f"v_lshlrev_b32 v{G}, 16, v144")
            E(f"v_and_b32 v{G+1}, 0xffff0000, v144")
            E(f"v_lshlrev_b32 v{G+2}, 16, v145")
            E(f"v_and_b32 v{G+3}, 0xffff0000, v145")
            E(f"v_lshlrev_b32 v{G+12}, 16, v146")
            E(f"v_and_b32 v{G+13}, 0xffff0000, v146")
            E(f"v_lshlrev_b32 v{G+14}, 16, v147")
            E(f"v_and_b32 v{G+15}, 0xffff0000, v147")
            for r in range(4):
                E(f"v_mul_f32 v{G+4+r}, v{G+r}, v{G+r}")
            for r in range(4):
                E(f"v_fma_f32 v{G+4+r}, v{G+4+r}, s46, 1.0")
            for r in range(4):
                E(f"v_mul_f32 v{G+4+r}, v{G+4+r}, v{G+r}")
            for r in range(4):
                E(f"v_mul_f32 v{G+4+r}, s47, v{G+4+r}")
            for r in range(4):
                E(f"v_exp_f32 v{G+4+r}, v{G+4+r}")
            for r in range(4):
                E(f"v_add_f32 v{G+4+r}, 1.0, v{G+4+r}")
            for r in range(4):
                E(f"v_rcp_f32 v{G+4+r}, v{G+4+r}")
            for r in range(4):
                E(f"v_mul_f32 v{G+4+r}, v{G+4+r}, v{G+r}")
            E(f"v_cvt_pk_bf16_f32 v144, v{G+4}, v{G+5}")
            E(f"v_cvt_pk_bf16_f32 v145, v{G+6}, v{G+7}")
            E(f"v_lshlrev_b32 v{G+4}, 16, v144")
            E(f"v_and_b32 v{G+5}, 0xffff0000, v144")
            E(f"v_lshlrev_b32 v{G+6}, 16, v145")
            E(f"v_and_b32 v{G+7}, 0xffff0000, v145")
            for r in range(4):
                E(f"v_mul_f32 v{G+4+r}, v{G+4+r}, v{G+12+r}")
            t = 148 + ((bn * 4 + g) % 4) * 2
            E(f"v_cvt_pk_bf16_f32 v{t}, v{G+4}, v{G+5}")
            E(f"v_cvt_pk_bf16_f32 v{t+1}, v{G+6}, v{G+7}")
            E(f"buffer_store_dwordx2 v[{t}:{t+1}], v{2+bn}, s[16:19], s45 offen offset:{8*g*2}")
    E("L_s1_done:")
    E("s_endpgm")


NST2 = 256


def gen_stage2():
    E(".p2align 8")
    E(".globl stage2_kernel")
    E(".type stage2_kernel,@function")
    E("stage2_kernel:")
    E(f"s_cmp_ge_u32 s2, {NST2}")
    E("s_cbranch_scc1 L_s2_done")
    E("s_load_dwordx2 s[4:5], s[0:1], 88")
    E("s_load_dwordx2 s[6:7], s[0:1], 0")
    E("s_load_dwordx2 s[32:33], s[0:1], 72")
    E("v_and_b32 v1, 63, v0")
    E("v_lshrrev_b32 v2, 6, v0")
    E("s_nop 0")
    E("v_readfirstlane_b32 s3, v2")
    E("s_nop 3")
    E("s_lshr_b32 s34, s3, 1")
    E("s_and_b32 s35, s3, 1")
    E("s_lshl_b32 s36, s34, 5")
    E("s_lshl_b32 s37, s35, 5")
    E("s_lshl_b32 s28, s3, 13")
    E("s_and_b32 s40, s2, 7")
    E("s_lshr_b32 s41, s2, 6")
    E("s_lshl_b32 s41, s41, 3")
    E("s_add_u32 s40, s40, s41")
    E("s_lshr_b32 s41, s2, 3")
    E("s_and_b32 s41, s41, 7")
    E("s_waitcnt lgkmcnt(0)")
    srd(20, "s6", "s7", XN_SZ)
    srd(16, "s32", "s33", XN_SZ)
    E("s_lshl_b32 s45, s40, 6")
    E("s_add_u32 s45, s45, s37")
    E("s_lshl_b32 s45, s45, 10")
    E("s_lshl_b32 s44, s41, 6")
    E("s_add_u32 s44, s44, s36")
    E("s_lshl_b32 s44, s44, 1")
    E("s_add_u32 s45, s45, s44")
    E("v_and_b32 v2, 31, v1")
    E("v_lshlrev_b32 v2, 10, v2")
    E("v_lshrrev_b32 v3, 5, v1")
    E("v_lshlrev_b32 v3, 3, v3")
    E("v_add_u32 v9, v2, v3")
    for g in range(4):
        E(f"buffer_load_dwordx2 v[{128+2*g}:{129+2*g}], v9, s[20:23], s45 offen offset:{16*g}")
    E(f"s_mul_i32 s42, s41, {64*LDZ}")
    E(f"s_add_u32 s42, s42, {V_OFF}")
    E(f"s_sub_u32 s46, {V_OFF + V_SZ}, s42")
    E(f"s_mul_i32 s43, s40, {64*LDZ}")
    E(f"s_add_u32 s43, s43, {Z_OFF}")
    E(f"s_sub_u32 s47, {Z_OFF + Z_SZ}, s43")
    E("s_cmp_eq_u32 s34, 1")
    E("s_cselect_b32 s42, s43, s42")
    E("s_cselect_b32 s46, s47, s46")
    add64(38, "s4", "s5", "s42")
    srd(8, "s38", "s39", "s46")
    E("s_lshl_b32 s24, s35, 7")
    E(f"s_add_u32 s25, s24, {32*LDZ}")
    E(f"s_movk_i32 s29, {LDZ}")
    gemm_setup("s29", "s36", "s37")
    groups = [("s[8:11]", "s24", "s28", 0), ("s[8:11]", "s25", "s28", 4096)]
    gemm_loop("s2", KZ // 128, 1, 1, 2, groups, 256, ["s24", "s25"], 3)
    for g in range(4):
        x0 = 128 + 2 * g
        for r in range(4):
            src = x0 + r // 2
            if r % 2 == 0:
                E(f"v_lshlrev_b32 v{140+r}, 16, v{src}")
            else:
                E(f"v_and_b32 v{140+r}, 0xffff0000, v{src}")
        for r in range(4):
            E(f"v_add_f32 v{140+r}, v{140+r}, v{ACC+4*g+r}")
        t = 144 + 2 * g
        E(f"v_cvt_pk_bf16_f32 v{t}, v140, v141")
        E(f"v_cvt_pk_bf16_f32 v{t+1}, v142, v143")
        E(f"buffer_store_dwordx2 v[{t}:{t+1}], v9, s[16:19], s45 offen offset:{16*g}")
    E("L_s2_done:")
    E("s_endpgm")


def desc(name, vgpr, sgpr):
    E(".p2align 6")
    E(f".amdhsa_kernel {name}")
    E(f"  .amdhsa_next_free_vgpr {vgpr}")
    E(f"  .amdhsa_next_free_sgpr {sgpr}")
    E(f"  .amdhsa_accum_offset {(vgpr+3)//4*4}")
    E("  .amdhsa_group_segment_fixed_size 0")
    E("  .amdhsa_kernarg_size 96")
    E("  .amdhsa_user_sgpr_count 2")
    E("  .amdhsa_user_sgpr_kernarg_segment_ptr 1")
    E("  .amdhsa_system_sgpr_workgroup_id_x 1")
    E("  .amdhsa_float_denorm_mode_32 3")
    E(".end_amdhsa_kernel")


def main():
    hdr = open(f"cdna_kernels/{NAME}.s.ref").read().split("\n")
    for line in hdr:
        if line.startswith(";") and "@launch" not in line and "Override launch" not in line and "grid=ceil" not in line:
            E(line)
        elif not line.startswith(";"):
            break
    E(f"; @launch kernel=prep_kernel grid=({NPREP},1,1) block=(256,1,1) lds=32768")
    E(f"; @launch kernel=stage1_kernel grid=({NST1},1,1) block=(256,1,1) lds={NS*STAGE}")
    E(f"; @launch kernel=stage2_kernel grid=({NST2},1,1) block=(256,1,1) lds={NS*STAGE}")
    E('.amdgcn_target "amdgcn-amd-amdhsa--gfx950"')
    E(".text")
    gen_prep()
    gen_stage1()
    gen_stage2()
    E('.section .rodata,"a"')
    desc("prep_kernel", 160, 64)
    desc("stage1_kernel", 160, 64)
    desc("stage2_kernel", 160, 64)
    open(f"cdna_kernels/{NAME}.s", "w").write("\n".join(out) + "\n")


if __name__ == "__main__":
    main()
```

```python
import struct, os
EXP = os.environ.get("EXP", "")

NAME = "parallel_sum__spectral_fnet__geglu_ffn__prompt"
S_, D_, F_ = 2048, 512, 1376
FP = 1408
KZ = 2432
LDZ = KZ * 2
XN_OFF = 0x000000
XNT_OFF = 0x200000
WGU_OFF = 0x400000
V_OFF = 0x700000
Z_OFF = 0xA00000
XN_SZ = S_ * D_ * 2
WGU_SZ = 2 * FP * D_ * 2
V_SZ = D_ * LDZ
Z_SZ = S_ * LDZ

out = []


STMOD = os.environ.get("STMOD", "")


def E(s=""):
    if STMOD and s.startswith("buffer_store"):
        s = s + " " + STMOD.replace("_", " ")
    out.append(s)


def f32(x):
    return "0x%08x" % struct.unpack("<I", struct.pack("<f", x))[0]


def srd(reg, lo, hi, size):
    E(f"s_mov_b32 s{reg}, {lo}")
    E(f"s_and_b32 s{reg+1}, {hi}, 0xffff")
    E(f"s_mov_b32 s{reg+2}, {size}")
    E(f"s_mov_b32 s{reg+3}, 0x00020000")


def add64(dlo, slo, shi, off):
    E(f"s_add_u32 s{dlo}, {slo}, {off}")
    E(f"s_addc_u32 s{dlo+1}, {shi}, 0")


N_LN = 128
N_TR = 264
N_CP = 16
NPREP = N_LN + N_TR + N_CP


PST = [0]


def pstamp():
    if "pstamp" not in EXP:
        return
    i = PST[0]
    PST[0] += 1
    E(f"s_memtime s[{64+2*i}:{65+2*i}]")
    E("s_waitcnt lgkmcnt(0)")


def pflush(wg, base):
    if "pstamp" not in EXP:
        return
    n = PST[0]
    PST[0] = 1
    lab = f"L_pf{base}"
    E("s_waitcnt vmcnt(0)")
    E(f"s_memtime s[{64+2*n}:{65+2*n}]")
    E("s_waitcnt lgkmcnt(0)")
    E(f"s_cmp_lg_u32 s2, {wg}")
    E(f"s_cbranch_scc1 {lab}")
    E("s_cmp_lg_u32 s3, 0")
    E(f"s_cbranch_scc1 {lab}")
    E("s_load_dwordx2 s[60:61], s[0:1], 80")
    E("s_waitcnt lgkmcnt(0)")
    E("s_mov_b32 s52, s60")
    E("s_and_b32 s53, s61, 0xffff")
    E("s_mov_b32 s54, 256")
    E("s_mov_b32 s55, 0x00020000")
    E("v_mov_b32 v2, 0")
    for i in range(n + 1):
        E(f"s_sub_u32 s62, s{64+2*i}, s64")
        E("v_mov_b32 v3, s62")
        E(f"buffer_store_dword v3, v2, s[52:55], 0 offen offset:{(base+i)*4}")
    E(f"{lab}:")


def gen_prep():
    E(".p2align 8")
    E(".globl prep_kernel")
    E(".type prep_kernel,@function")
    E("prep_kernel:")
    pstamp()
    E(f"s_cmp_ge_u32 s2, {NPREP}")
    E("s_cbranch_scc1 L_prep_done")
    E("s_load_dwordx2 s[4:5], s[0:1], 88")
    E("v_and_b32 v1, 63, v0")
    E("v_lshrrev_b32 v2, 6, v0")
    E("s_nop 0")
    E("v_readfirstlane_b32 s3, v2")
    E(f"s_cmp_lt_u32 s2, {N_LN}")
    E("s_cbranch_scc1 L_prep_ln")
    E(f"s_cmp_lt_u32 s2, {N_LN + N_TR}")
    E("s_cbranch_scc1 L_prep_tr")
    E("s_branch L_prep_copy")

    NR = 4
    E("L_prep_ln:")
    if "noln" in EXP:
        E("s_endpgm")
    E("s_load_dwordx2 s[6:7], s[0:1], 0")
    E("s_waitcnt lgkmcnt(0)")
    srd(8, "s6", "s7", XN_SZ)
    add64(24, "s4", "s5", XN_OFF)
    srd(12, "s24", "s25", XN_SZ)
    add64(24, "s4", "s5", XNT_OFF)
    srd(16, "s24", "s25", XN_SZ)
    E("s_lshl_b32 s20, s2, 14")
    E("s_lshl_b32 s22, s3, 12")
    E("s_add_u32 s20, s20, s22")
    E("v_lshlrev_b32 v3, 4, v1")
    pstamp()
    P0 = 16
    X0 = 64
    for i in range(NR):
        E(f"buffer_load_dwordx4 v[{P0+4*i}:{P0+4*i+3}], v3, s[8:11], s20 offen offset:{i*1024}")
    for i in range(NR):
        E(f"s_waitcnt vmcnt({NR-1-i})")
        for j in range(4):
            E(f"v_lshlrev_b32 v{X0+8*i+2*j}, 16, v{P0+4*i+j}")
            E(f"v_and_b32 v{X0+8*i+2*j+1}, 0xffff0000, v{P0+4*i+j}")
    pstamp()
    R0 = 48
    M0r = 128
    T0 = 136
    U0 = 144
    W0 = 152

    def wave_reduce(base):
        for ctl in ["row_shr:1 row_mask:0xf bank_mask:0xf bound_ctrl:0",
                    "row_shr:2 row_mask:0xf bank_mask:0xf bound_ctrl:0",
                    "row_shr:4 row_mask:0xf bank_mask:0xf bound_ctrl:0",
                    "row_shr:8 row_mask:0xf bank_mask:0xf bound_ctrl:0",
                    "row_bcast:15 row_mask:0xa bank_mask:0xf",
                    "row_bcast:31 row_mask:0xc bank_mask:0xf"]:
            for i in range(NR):
                E(f"v_add_f32_dpp v{base+i}, v{base+i}, v{base+i} {ctl}")
        for i in range(NR):
            E(f"v_readlane_b32 s{32+i}, v{base+i}, 63")
        E("s_nop 1")

    for i in range(NR):
        E(f"v_add_f32 v{R0+i}, v{X0+8*i}, v{X0+8*i+1}")
    for j in range(2, 8):
        for i in range(NR):
            E(f"v_add_f32 v{R0+i}, v{R0+i}, v{X0+8*i+j}")
    wave_reduce(R0)
    for i in range(NR):
        E(f"v_mov_b32 v{M0r+i}, s{32+i}")
    for i in range(NR):
        E(f"v_mul_f32 v{M0r+i}, {f32(1.0/512)}, v{M0r+i}")
    for j in range(8):
        for i in range(NR):
            E(f"v_sub_f32 v{T0+i}, v{X0+8*i+j}, v{M0r+i}")
        for i in range(NR):
            if j == 0:
                E(f"v_mul_f32 v{R0+i}, v{T0+i}, v{T0+i}")
            else:
                E(f"v_fmac_f32 v{R0+i}, v{T0+i}, v{T0+i}")
    wave_reduce(R0)
    for i in range(NR):
        E(f"v_mov_b32 v{T0+i}, s{32+i}")
    for i in range(NR):
        E(f"v_mul_f32 v{T0+i}, {f32(1.0/512)}, v{T0+i}")
    for i in range(NR):
        E(f"v_cvt_pk_bf16_f32 v{U0+i}, v{T0+i}, v{M0r+i}")
    for i in range(NR):
        E(f"v_lshlrev_b32 v{T0+i}, 16, v{U0+i}")
        E(f"v_and_b32 v{M0r+i}, 0xffff0000, v{U0+i}")
    for i in range(NR):
        E(f"v_add_f32 v{T0+i}, {f32(1e-5)}, v{T0+i}")
    for i in range(NR):
        E(f"v_cvt_pk_bf16_f32 v{U0+i}, v{T0+i}, v{T0+i}")
    for i in range(NR):
        E(f"v_lshlrev_b32 v{T0+i}, 16, v{U0+i}")
    for i in range(NR):
        E(f"v_sqrt_f32 v{T0+i}, v{T0+i}")
    E("s_nop 0")
    for i in range(NR):
        E(f"v_cvt_pk_bf16_f32 v{U0+i}, v{T0+i}, v{T0+i}")
    for i in range(NR):
        E(f"v_lshlrev_b32 v{T0+i}, 16, v{U0+i}")
    for i in range(NR):
        E(f"v_rcp_f32 v{W0+i}, v{T0+i}")
    E("s_nop 0")
    for i in range(NR):
        for j in range(0, 8, 2):
            a_, b_ = X0 + 8 * i + j, X0 + 8 * i + j + 1
            E(f"v_sub_f32 v{a_}, v{a_}, v{M0r+i}")
            E(f"v_sub_f32 v{b_}, v{b_}, v{M0r+i}")
            E(f"v_cvt_pk_bf16_f32 v4, v{a_}, v{b_}")
            E(f"v_lshlrev_b32 v{a_}, 16, v4")
            E(f"v_and_b32 v{b_}, 0xffff0000, v4")
            E(f"v_mul_f32 v5, v{a_}, v{W0+i}")
            E(f"v_mul_f32 v6, v{b_}, v{W0+i}")
            E(f"v_fma_f32 v7, -v5, v{T0+i}, v{a_}")
            E(f"v_fma_f32 v8, -v6, v{T0+i}, v{b_}")
            E(f"v_fma_f32 v5, v7, v{W0+i}, v5")
            E(f"v_fma_f32 v6, v8, v{W0+i}, v6")
            E(f"v_cvt_pk_bf16_f32 v{P0+4*i+j//2}, v5, v6")
    pstamp()
    E("v_lshlrev_b32 v9, 12, v2")
    E("v_add_u32 v9, v9, v3")
    for i in range(NR):
        E(f"ds_write_b128 v9, v[{P0+4*i}:{P0+4*i+3}] offset:{i*1024}")
        E(f"buffer_store_dwordx4 v[{P0+4*i}:{P0+4*i+3}], v3, s[12:15], s20 offen offset:{i*1024}")
    E("s_waitcnt lgkmcnt(0)")
    E("s_barrier")
    pstamp()
    E("v_lshlrev_b32 v10, 1, v0")
    Q0 = 64
    for dd in range(2):
        for j in range(16):
            E(f"ds_read_u16 v{Q0 + dd*16 + j}, v10 offset:{j*1024 + dd*512}")
    E("v_lshlrev_b32 v11, 12, v0")
    E("s_lshl_b32 s20, s2, 5")
    E("s_add_u32 s21, s20, 0x100000")
    E("s_waitcnt lgkmcnt(0)")
    for i in range(16):
        E(f"v_lshl_or_b32 v{Q0+i}, v{Q0+2*i+1}, 16, v{Q0+2*i}")
    for dd in range(2):
        for c in range(2):
            r = Q0 + (dd * 2 + c) * 4
            so = "s20" if dd == 0 else "s21"
            E(f"buffer_store_dwordx4 v[{r}:{r+3}], v11, s[16:19], {so} offen offset:{16*c}")
    pstamp()
    pflush(1, 0)
    E("s_endpgm")

    E("L_prep_tr:")
    if "notr" in EXP:
        E("s_endpgm")
    E("s_load_dwordx2 s[6:7], s[0:1], 48")
    E("s_load_dwordx2 s[26:27], s[0:1], 56")
    E("s_load_dwordx2 s[28:29], s[0:1], 64")
    E(f"s_sub_u32 s20, s2, {N_LN}")
    E("s_waitcnt lgkmcnt(0)")
    E("s_cmp_ge_u32 s20, 176")
    E("s_cbranch_scc1 L_prep_tr_dn")
    E("s_cmp_ge_u32 s20, 88")
    E("s_cselect_b32 s21, 1, 0")
    E("s_cselect_b32 s6, s26, s6")
    E("s_cselect_b32 s7, s27, s7")
    E("s_mul_i32 s22, s21, 88")
    E("s_sub_u32 s20, s20, s22")
    E("s_and_b32 s22, s20, 7")
    E("s_lshr_b32 s23, s20, 3")
    srd(8, "s6", "s7", D_ * F_ * 2)
    add64(24, "s4", "s5", WGU_OFF)
    srd(12, "s24", "s25", WGU_SZ)
    E("v_lshrrev_b32 v3, 4, v1")
    E("v_and_b32 v4, 15, v1")
    E(f"s_movk_i32 s30, {F_*2}")
    E("v_mul_lo_u32 v5, v3, s30")
    E("v_lshlrev_b32 v6, 4, v4")
    E("v_add_u32 v5, v5, v6")
    E("s_lshl_b32 s31, s23, 7")
    E("v_lshlrev_b32 v6, 3, v4")
    E("v_add_u32 v6, s31, v6")
    E(f"v_cmp_gt_u32 vcc, {F_}, v6")
    E("v_mov_b32 v7, 0x7ff00000")
    E("s_nop 1")
    E("v_cndmask_b32 v5, v7, v5, vcc")
    E("s_lshl_b32 s24, s22, 6")
    E("s_lshl_b32 s25, s3, 4")
    E("s_add_u32 s24, s24, s25")
    E(f"s_mul_i32 s24, s24, {F_*2}")
    E("s_lshl_b32 s25, s23, 8")
    E("s_add_u32 s24, s24, s25")
    E(f"s_movk_i32 s30, {4*F_*2}")
    E("v_and_b32 v8, 127, v0")
    E("v_add_u32 v8, s31, v8")
    E("v_lshrrev_b32 v9, 5, v8")
    E("v_lshlrev_b32 v9, 6, v9")
    E("v_and_b32 v8, 31, v8")
    E("v_add_u32 v8, v8, v9")
    E("s_lshl_b32 s25, s21, 5")
    E("v_add_u32 v8, s25, v8")
    E("v_lshlrev_b32 v8, 10, v8")
    E("s_lshl_b32 s31, s22, 7")
    E("s_branch L_prep_tr_go")
    E("L_prep_tr_dn:")
    E("s_sub_u32 s20, s20, 176")
    E("s_lshr_b32 s22, s20, 2")
    E("s_and_b32 s23, s20, 3")
    srd(8, "s28", "s29", F_ * D_ * 2)
    add64(24, "s4", "s5", V_OFF)
    srd(12, "s24", "s25", V_SZ)
    E("v_lshrrev_b32 v3, 4, v1")
    E("v_and_b32 v4, 15, v1")
    E("v_lshlrev_b32 v5, 10, v3")
    E("v_lshlrev_b32 v6, 4, v4")
    E("v_add_u32 v5, v5, v6")
    E("s_lshl_b32 s24, s22, 6")
    E("s_lshl_b32 s25, s3, 4")
    E("s_add_u32 s24, s24, s25")
    E("s_lshl_b32 s24, s24, 10")
    E("s_lshl_b32 s25, s23, 8")
    E("s_add_u32 s24, s24, s25")
    E("s_movk_i32 s30, 4096")
    E("v_and_b32 v8, 127, v0")
    E("s_lshl_b32 s31, s23, 7")
    E("v_add_u32 v8, s31, v8")
    E(f"s_movk_i32 s25, {LDZ}")
    E("v_mul_lo_u32 v8, v8, s25")
    E("s_lshl_b32 s31, s22, 7")
    E("s_add_u32 s31, s31, 2048")
    E("L_prep_tr_go:")
    pstamp()
    for i in range(4):
        E(f"buffer_load_dwordx4 v[{16+4*i}:{16+4*i+3}], v5, s[8:11], s24 offen")
        E("s_add_u32 s24, s24, s30")
    E("v_lshlrev_b32 v9, 12, v2")
    E("v_lshlrev_b32 v10, 4, v1")
    E("v_add_u32 v9, v9, v10")
    E("v_lshrrev_b32 v10, 7, v0")
    E("v_lshlrev_b32 v11, 6, v10")
    E("v_add_u32 v8, v8, v11")
    E("v_lshlrev_b32 v10, 13, v10")
    E("v_and_b32 v11, 127, v0")
    E("v_lshlrev_b32 v11, 1, v11")
    E("v_add_u32 v10, v10, v11")
    for i in range(4):
        E(f"s_waitcnt vmcnt({3-i})")
        E(f"ds_write_b128 v9, v[{16+4*i}:{16+4*i+3}] offset:{i*1024}")
    E("s_waitcnt lgkmcnt(0)")
    pstamp()
    E("s_barrier")
    pstamp()
    for j in range(32):
        E(f"ds_read_u16 v{32+j}, v10 offset:{j*256}")
    for i in range(16):
        if i % 4 == 0:
            E(f"s_waitcnt lgkmcnt({min(15, 24 - 2*i)})")
        E(f"v_lshl_or_b32 v{32+i}, v{32+2*i+1}, 16, v{32+2*i}")
        if i % 4 == 3:
            E(f"buffer_store_dwordx4 v[{32+i-3}:{32+i}], v8, s[12:15], s31 offen offset:{(i//4)*16}")
    pstamp()
    pflush(N_LN + 1, 16)
    E("s_endpgm")

    E("L_prep_copy:")
    if "nocp" in EXP:
        E("s_endpgm")
    E("s_load_dwordx2 s[6:7], s[0:1], 24")
    E("s_load_dwordx2 s[26:27], s[0:1], 32")
    E(f"s_sub_u32 s20, s2, {N_LN + N_TR}")
    E("s_lshr_b32 s21, s20, 3")
    E("s_and_b32 s20, s20, 7")
    E("s_waitcnt lgkmcnt(0)")
    E("s_cmp_eq_u32 s21, 1")
    E("s_cselect_b32 s6, s26, s6")
    E("s_cselect_b32 s7, s27, s7")
    E("s_cselect_b32 s28, 0x80008000, 0")
    srd(8, "s6", "s7", D_ * D_ * 2)
    add64(24, "s4", "s5", V_OFF)
    srd(12, "s24", "s25", V_SZ)
    E("s_lshl_b32 s22, s20, 6")
    E("s_add_u32 s22, s22, s3")
    E("s_lshl_b32 s23, s22, 10")
    E(f"s_mul_i32 s24, s22, {LDZ}")
    E("s_lshl_b32 s25, s21, 10")
    E("s_add_u32 s24, s24, s25")
    E("v_lshlrev_b32 v3, 4, v1")
    for i in range(16):
        E(f"buffer_load_dwordx4 v[{16+4*i}:{16+4*i+3}], v3, s[8:11], s23 offen")
        E("s_add_u32 s23, s23, 4096")
    for i in range(16):
        E("s_waitcnt vmcnt(15)")
        for j in range(4):
            E(f"v_xor_b32 v{16+4*i+j}, s28, v{16+4*i+j}")
        E(f"buffer_store_dwordx4 v[{16+4*i}:{16+4*i+3}], v3, s[12:15], s24 offen")
        E(f"s_add_u32 s24, s24, {4*LDZ}")
    E("L_prep_done:")
    E("s_endpgm")


STAGE = 32768
NS = 4
STG_OFF = NS * STAGE
VOFF = 10
VA = 16
VB = 24
VF = 32
ACC = 96
ET = 160


def dma_setup(ld_sgpr):
    if "contig" in EXP:
        E(f"s_movk_i32 {ld_sgpr}, 128")
    E("v_lshrrev_b32 v2, 3, v1")
    E("v_lshrrev_b32 v3, 4, v1")
    E("v_and_b32 v4, 7, v1")
    for i in range(4):
        E(f"v_add_u32 v5, {8*i}, v2")
        E(f"v_mul_lo_u32 v5, v5, {ld_sgpr}")
        E(f"v_add_u32 v6, {4*i}, v3")
        E("v_and_b32 v6, 7, v6")
        E("v_xor_b32 v6, v6, v4")
        E("v_lshlrev_b32 v6, 4, v6")
        E("v_add_u32 v5, v5, v6")
        if i:
            E(f"v_subrev_u32 v5, {i*1024}, v5")
        E(f"v_mov_b32 v{VOFF+i}, v5")


def frag_setup(wrowA, wrowB):
    E("v_and_b32 v2, 31, v1")
    E("v_lshrrev_b32 v3, 5, v1")
    E("v_lshrrev_b32 v4, 1, v2")
    E("v_and_b32 v4, 7, v4")
    E("v_xor_b32 v4, v4, v3")
    E("v_lshlrev_b32 v4, 4, v4")
    E("v_lshlrev_b32 v5, 7, v2")
    E("v_add_u32 v4, v4, v5")
    E(f"s_lshl_b32 s30, {wrowA}, 7")
    E(f"s_lshl_b32 s31, {wrowB}, 7")
    for j in range(4):
        E(f"v_xor_b32 v5, {j*32}, v4")
        for half in range(2):
            E(f"v_add_u32 v{VA+half*4+j}, s30, v5")
            E(f"v_add_u32 v{VB+half*4+j}, s31, v5")
            if half == 0:
                E("v_add_u32 v5, 0x10000, v5")


class Gemm:
    def __init__(self, BM, BN, KP, groups, kadv, soffs):
        self.BM, self.BN, self.KP = BM, BN, KP
        self.groups, self.kadv, self.soffs = groups, kadv, soffs
        self.L = 4 * len(groups)
        self.nsub = 4 * KP
        self.fsz = (BM + BN) * 4
        self.panel = 16384 // KP
        self.nr = BM + BN

    def issue(self, slot):
        if "nodma" in EXP:
            return
        for (sr, so, mb, mi) in self.groups:
            E(f"s_add_u32 m0, {mb}, {slot*STAGE + mi}")
            E("s_nop 0")
            for i in range(4):
                if "vload" in EXP:
                    rr = 32 + ((slot * 8 + (mi > 0) * 4 + i) * 4)
                    E(f"buffer_load_dwordx4 v[{rr}:{rr+3}], v{VOFF+i}, {sr}, {so} offen offset:{i*1024}")
                else:
                    E(f"buffer_load_dwordx4 v{VOFF+i}, {sr}, {so} offen offset:{i*1024} lds")
        for so in self.soffs:
            E(f"s_add_u32 {so}, {so}, {self.kadv}")
            if getattr(self, "wrap", None):
                E(f"s_and_b32 {so}, {so}, {self.wrap}")

    def reads(self, slot, sub, st):
        if "nocomp" in EXP:
            return
        p, j = sub // 4, sub % 4
        half = slot // 2
        base = (slot % 2) * STAGE
        for bm in range(self.BM):
            r = VF + st * self.fsz + bm * 4
            E(f"ds_read_b128 v[{r}:{r+3}], v{VA+half*4+j} offset:{base + p*self.panel + bm*4096}")
        for bn in range(self.BN):
            r = VF + st * self.fsz + self.BM * 4 + bn * 4
            E(f"ds_read_b128 v[{r}:{r+3}], v{VB+half*4+j} offset:{base + 16384 + p*self.panel + bn*4096}")

    def mfmas(self, st):
        if "nocomp" in EXP:
            return
        for bm in range(self.BM):
            for bn in range(self.BN):
                a = VF + st * self.fsz + bm * 4
                b = VF + st * self.fsz + self.BM * 4 + bn * 4
                c = ACC + (bm * self.BN + bn) * 16
                E(f"v_mfma_f32_32x32x16_bf16 v[{c}:{c+15}], v[{a}:{a+3}], v[{b}:{b+3}], v[{c}:{c+15}]")

    def zero_acc(self):
        for r in range(ACC, ACC + self.BM * self.BN * 16):
            E(f"v_mov_b32 v{r}, 0")

    def cons_step(self, slot, PD, nxt):
        n = self.nsub
        nslot = (slot + 1) % NS
        for u in range(n):
            st = u % 4
            t = u + PD
            if t < n:
                self.reads(slot, t, t % 4)
                E(f"s_waitcnt lgkmcnt({PD*self.nr})")
            else:
                if t == n:
                    E("s_waitcnt lgkmcnt(0)")
                    if nxt == "always":
                        E("s_barrier")
                    elif nxt is not None:
                        lab = nxt
                        E("s_cmp_eq_u32 s27, 0")
                        E(f"s_cbranch_scc1 {lab}_a")
                        E("s_barrier")
                if nxt is not None:
                    self.reads(nslot, t - n, t % 4)
                    if nxt != "always":
                        E(f"{nxt}_{'a' if t == n else 'b%d' % t}:")
            self.mfmas(st)
            if t >= n and t + 1 < n + PD and nxt not in (None, "always"):
                E("s_cmp_eq_u32 s27, 0")
                E(f"s_cbranch_scc1 {nxt}_b{t+1}")


NSTAMP = [0]


def stamp():
    if "stamp" not in EXP:
        return
    i = NSTAMP[0]
    NSTAMP[0] += 1
    E(f"s_memtime s[{64+2*i}:{65+2*i}]")
    E("s_waitcnt lgkmcnt(0)")


def stamp_flush(base):
    if "stamp" not in EXP:
        return
    n = NSTAMP[0]
    NSTAMP[0] = 0
    lab = f"L_sf{base}"
    E("s_and_b32 s62, s2, 127")
    E("s_cmp_lg_u32 s62, 0")
    E(f"s_cbranch_scc1 {lab}")
    E("s_cmp_lg_u32 s3, 0")
    E(f"s_cbranch_scc1 {lab}")
    E("s_load_dwordx2 s[60:61], s[0:1], 80")
    E("s_waitcnt lgkmcnt(0)")
    E("s_mov_b32 s52, s60")
    E("s_and_b32 s53, s61, 0xffff")
    E("s_mov_b32 s54, 256")
    E("s_mov_b32 s55, 0x00020000")
    E("v_mov_b32 v2, 0")
    for i in range(n):
        E(f"s_sub_u32 s62, s{64+2*i}, s64")
        E("v_mov_b32 v3, s62")
        E(f"buffer_store_dword v3, v2, s[52:55], 0 offen offset:{(base+i)*4}")
    E(f"{lab}:")


def rt_begin():
    if "rt" not in EXP:
        return
    E("s_memrealtime s[92:93]")
    E("s_memtime s[96:97]")


def rt_end(slot):
    if "rt" not in EXP:
        return
    lab = f"L_rt{NRT[0]}"
    NRT[0] += 1
    E("s_waitcnt vmcnt(0) lgkmcnt(0)")
    E("s_memrealtime s[94:95]")
    E("s_memtime s[98:99]")
    E("s_cmp_lg_u32 s3, 0")
    E(f"s_cbranch_scc1 {lab}")
    E("s_load_dwordx2 s[60:61], s[0:1], 88")
    E("s_waitcnt lgkmcnt(0)")
    E(f"s_add_u32 s52, s60, {0x1E00000 + slot*0x10000}")
    E("s_addc_u32 s53, s61, 0")
    E("s_and_b32 s53, s53, 0xffff")
    E("s_mov_b32 s54, 0x10000")
    E("s_mov_b32 s55, 0x00020000")
    E("s_lshl_b32 s62, s2, 4")
    E("v_mov_b32 v2, s62")
    E("v_mov_b32 v4, s92")
    E("v_mov_b32 v5, s94")
    E("s_sub_u32 s62, s98, s96")
    E("v_mov_b32 v6, s62")
    E("v_mov_b32 v7, 0")
    E("buffer_store_dwordx4 v[4:7], v2, s[52:55], 0 offen")
    E(f"{lab}:")


NRT = [0]


def wave_ids():
    rt_begin()
    E("v_and_b32 v1, 63, v0")
    E("v_lshrrev_b32 v2, 6, v0")
    E("s_nop 0")
    E("v_readfirstlane_b32 s3, v2")
    E("s_nop 3")


NBIG = 128
NST1 = 256


def s1_small_tile(ti):
    E(f"s_sub_u32 s42, s2, {NBIG}")
    E("s_and_b32 s43, s42, 7")
    E("s_lshr_b32 s42, s42, 3")
    E(f"s_lshl_b32 s44, {ti}, 4")
    E("s_add_u32 s42, s42, s44")
    E("s_lshr_b32 s40, s42, 1")
    E("s_and_b32 s42, s42, 1")
    E("s_lshl_b32 s41, s43, 1")
    E("s_add_u32 s41, s41, s42")


def gen_stage1():
    E(".p2align 8")
    E(".globl stage1_kernel")
    E(".type stage1_kernel,@function")
    E("stage1_kernel:")
    E(f"s_cmp_ge_u32 s2, {NST1}")
    E("s_cbranch_scc1 L_s1_done")
    E("s_load_dwordx2 s[4:5], s[0:1], 88")
    E("s_load_dwordx2 s[6:7], s[0:1], 8")
    E("s_load_dwordx2 s[32:33], s[0:1], 16")
    wave_ids()
    E(f"s_sub_u32 s48, s2, {NBIG}")
    E("s_lshr_b32 s48, s48, 3")
    E("s_cmp_lt_u32 s48, 12")
    E("s_cselect_b32 s48, 3, 2")
    E("s_waitcnt lgkmcnt(0)")
    E("s_cmp_ge_u32 s3, 4")
    E("s_cbranch_scc1 L_s1_loader")

    g = Gemm(2, 2, 1, [("s[8:11]", "s24", "s28", 0), ("s[12:15]", "s24", "s28", 16384)], 128, ["s24"])
    PD = 2
    E("s_lshr_b32 s34, s3, 1")
    E("s_and_b32 s35, s3, 1")
    E("s_lshl_b32 s36, s34, 6")
    E("s_lshl_b32 s37, s35, 6")
    add64(38, "s4", "s5", Z_OFF)
    srd(16, "s38", "s39", Z_SZ)
    frag_setup("s36", "s37")
    E("s_lshl_b32 s49, s3, 13")
    E(f"s_add_u32 s49, s49, {STG_OFF}")
    E(f"s_cmp_ge_u32 s2, {NBIG}")
    E("s_cbranch_scc1 L_s1c_small")

    stamp()
    if "pf1" in EXP:
        E("s_and_b32 s40, s2, 7")
        E("s_lshr_b32 s41, s2, 5")
        E("s_lshl_b32 s41, s41, 3")
        E("s_add_u32 s40, s40, s41")
        E("s_lshr_b32 s41, s2, 3")
        E("s_and_b32 s41, s41, 3")
        E("s_cmp_ge_u32 s40, 16")
        E("s_cselect_b32 s6, s32, s6")
        E("s_cselect_b32 s7, s33, s7")
        srd(8, "s6", "s7", S_ * S_ * 2)
        E("s_and_b32 s45, s40, 15")
        E("s_lshl_b32 s42, s45, 7")
        E("s_lshl_b32 s43, s3, 5")
        E("s_add_u32 s42, s42, s43")
        E("s_lshl_b32 s42, s42, 12")
        E("s_lshl_b32 s43, s41, 10")
        E("s_add_u32 s42, s42, s43")
        E("v_lshlrev_b32 v2, 4, v1")
        for i in range(32):
            E(f"buffer_load_dwordx4 v[{ET+4*(i%8)}:{ET+4*(i%8)+3}], v2, s[8:11], s42 offen")
            E("s_add_u32 s42, s42, 4096")
    g.zero_acc()
    E("s_barrier")
    stamp()
    for u in range(PD):
        g.reads(0, u, u)
    E("s_mov_b32 s27, 7")
    E("L_s1c_big_loop:")
    for s in range(NS):
        g.cons_step(s, PD, "always" if s < NS - 1 else "L_s1cb")
    E("s_sub_u32 s27, s27, 1")
    E("s_cmp_ge_i32 s27, 0")
    E("s_cbranch_scc1 L_s1c_big_loop")
    E("s_nop 15")
    stamp()
    E("s_and_b32 s40, s2, 7")
    E("s_lshr_b32 s41, s2, 5")
    E("s_lshl_b32 s41, s41, 3")
    E("s_add_u32 s40, s40, s41")
    E("s_lshr_b32 s41, s2, 3")
    E("s_and_b32 s41, s41, 3")
    E("s_cmp_ge_u32 s40, 16")
    E("s_cselect_b32 s44, 512, 0")
    E("s_and_b32 s45, s40, 15")
    E("s_lshl_b32 s45, s45, 7")
    E("s_add_u32 s45, s45, s37")
    E(f"s_mul_i32 s45, s45, {LDZ}")
    E("s_lshl_b32 s41, s41, 7")
    E("s_add_u32 s44, s44, s41")
    E("s_add_u32 s44, s44, s36")
    E("s_lshl_b32 s44, s44, 1")
    E("s_add_u32 s45, s45, s44")
    E("v_and_b32 v2, 31, v1")
    E("v_lshrrev_b32 v3, 1, v2")
    E("v_and_b32 v3, 7, v3")
    E("v_lshlrev_b32 v3, 4, v3")
    E("v_lshlrev_b32 v2, 7, v2")
    E("v_add_u32 v2, v2, v3")
    E("v_lshrrev_b32 v3, 5, v1")
    E("v_lshlrev_b32 v3, 3, v3")
    E("v_add_u32 v2, v2, v3")
    E("v_add_u32 v2, s49, v2")
    n = 0
    for bm in range(2):
        for gg in range(4):
            ch = bm * 4 + gg
            E(f"v_xor_b32 v4, {ch<<4}, v2")
            for bn in range(2):
                c = ACC + (bm * 2 + bn) * 16
                t = ET + (n % 8) * 2
                n += 1
                E(f"v_cvt_pk_bf16_f32 v{t}, v{c+4*gg}, v{c+4*gg+1}")
                E(f"v_cvt_pk_bf16_f32 v{t+1}, v{c+4*gg+2}, v{c+4*gg+3}")
                E(f"ds_write_b64 v4, v[{t}:{t+1}] offset:{bn*4096}")
    E("v_lshrrev_b32 v2, 3, v1")
    E("v_and_b32 v3, 7, v1")
    E("v_lshrrev_b32 v4, 4, v1")
    E("v_xor_b32 v4, v4, v3")
    E("v_lshlrev_b32 v4, 4, v4")
    E("v_lshlrev_b32 v5, 7, v2")
    E("v_add_u32 v4, v4, v5")
    E("v_add_u32 v4, s49, v4")
    E("v_xor_b32 v5, 64, v4")
    E(f"s_movk_i32 s29, {LDZ}")
    E("v_mul_lo_u32 v6, v2, s29")
    E("v_lshlrev_b32 v3, 4, v3")
    E("v_add_u32 v6, v6, v3")
    E("s_waitcnt lgkmcnt(0)")
    for i in range(8):
        E(f"ds_read_b128 v[{ET+4*i}:{ET+4*i+3}], v{4 + (i&1)} offset:{i*1024}")
    for i in range(8):
        E(f"s_waitcnt lgkmcnt({7-i})")
        E(f"buffer_store_dwordx4 v[{ET+4*i}:{ET+4*i+3}], v6, s[16:19], s45 offen")
        E(f"s_add_u32 s45, s45, {8*LDZ}")
    stamp()
    E("s_waitcnt vmcnt(0)")
    stamp()
    stamp_flush(0)
    rt_end(0)
    E("s_endpgm")

    E("L_s1c_small:")
    stamp()
    CK = -2.0 * 0.7978845608028654 * 1.4426950408889634
    E(f"s_mov_b32 s46, {f32(0.044715*CK)}")
    E(f"s_mov_b32 s47, {f32(0.044715*CK)}")
    E(f"v_mov_b32 v14, {f32(CK)}")
    E(f"v_mov_b32 v15, {f32(CK)}")
    E("s_mov_b32 s54, 1.0")
    E("s_mov_b32 s55, 1.0")
    E("s_mov_b32 s50, 0")
    E("s_lshl_b32 s27, s48, 1")
    E("s_sub_u32 s27, s27, 1")
    E("v_and_b32 v2, 31, v1")
    E("v_lshrrev_b32 v3, 2, v2")
    E("v_and_b32 v3, 3, v3")
    E("v_lshlrev_b32 v3, 4, v3")
    E("v_lshlrev_b32 v2, 6, v2")
    E("v_add_u32 v2, v2, v3")
    E("v_lshrrev_b32 v3, 5, v1")
    E("v_lshlrev_b32 v3, 3, v3")
    E("v_add_u32 v2, v2, v3")
    E("v_add_u32 v7, s49, v2")
    E("v_lshrrev_b32 v2, 2, v1")
    E("v_and_b32 v3, 3, v1")
    E("v_lshrrev_b32 v4, 4, v1")
    E("v_and_b32 v4, 3, v4")
    E("v_xor_b32 v4, v4, v3")
    E("v_lshlrev_b32 v4, 4, v4")
    E("v_lshlrev_b32 v5, 6, v2")
    E("v_add_u32 v4, v4, v5")
    E("v_add_u32 v8, s49, v4")
    E(f"s_movk_i32 s29, {LDZ}")
    E("v_mul_lo_u32 v9, v2, s29")
    E("v_lshlrev_b32 v3, 4, v3")
    E("v_add_u32 v9, v9, v3")
    E("s_barrier")
    for u in range(PD):
        g.reads(0, u, u)
    stamp()
    E("L_s1c_tile:")
    g.zero_acc()
    for rep in range(2):
        for s in range(NS):
            g.cons_step(s, PD, "always" if s < NS - 1 else f"L_s1cs{rep}")
        E("s_sub_u32 s27, s27, 1")
    E("s_nop 15")
    if "stamp" in EXP:
        E("s_memtime s[90:91]")
        E("s_waitcnt lgkmcnt(0)")
        E("s_cmp_eq_u32 s50, 0")
        E("s_cselect_b32 s68, s90, s68")
        E("s_cmp_eq_u32 s50, 1")
        E("s_cselect_b32 s72, s90, s72")
        E("s_cmp_eq_u32 s50, 2")
        E("s_cselect_b32 s76, s90, s76")
    s1_small_tile("s50")
    E("s_lshl_b32 s45, s41, 7")
    E("s_add_u32 s45, s45, s37")
    E(f"s_mul_i32 s45, s45, {LDZ}")
    E("s_lshl_b32 s44, s40, 1")
    E("s_add_u32 s44, s44, s34")
    E("s_lshl_b32 s44, s44, 6")
    E("s_add_u32 s45, s45, s44")
    E("s_add_u32 s45, s45, 2048")
    for bn in range(2):
        cg = ACC + (0 * 2 + bn) * 16
        cu = ACC + (1 * 2 + bn) * 16
        for gp in range(2):
            G = ET + 16 * gp
            for q in range(2):
                gg = gp * 2 + q
                T = G + 4 * q
                for r in range(0, 4, 2):
                    E(f"v_pk_mul_f32 v[{T+r}:{T+r+1}], v[{cg+4*gg+r}:{cg+4*gg+r+1}], v[{cg+4*gg+r}:{cg+4*gg+r+1}]")
            for q in range(2):
                T = G + 4 * q
                for r in range(0, 4, 2):
                    E(f"v_pk_fma_f32 v[{T+r}:{T+r+1}], v[{T+r}:{T+r+1}], s[46:47], v[14:15]")
            for q in range(2):
                gg = gp * 2 + q
                T = G + 4 * q
                for r in range(0, 4, 2):
                    E(f"v_pk_mul_f32 v[{T+r}:{T+r+1}], v[{T+r}:{T+r+1}], v[{cg+4*gg+r}:{cg+4*gg+r+1}]")
            for r in range(8):
                E(f"v_exp_f32 v{G+r}, v{G+r}")
            for r in range(0, 8, 2):
                E(f"v_pk_add_f32 v[{G+r}:{G+r+1}], v[{G+r}:{G+r+1}], s[54:55]")
            for r in range(8):
                E(f"v_rcp_f32 v{G+r}, v{G+r}")
            for q in range(2):
                gg = gp * 2 + q
                T = G + 8 + 4 * q
                for r in range(0, 4, 2):
                    E(f"v_pk_mul_f32 v[{T+r}:{T+r+1}], v[{cg+4*gg+r}:{cg+4*gg+r+1}], v[{cu+4*gg+r}:{cu+4*gg+r+1}]")
            for r in range(0, 8, 2):
                E(f"v_pk_mul_f32 v[{G+r}:{G+r+1}], v[{G+r}:{G+r+1}], v[{G+8+r}:{G+8+r+1}]")
            for q in range(2):
                gg = gp * 2 + q
                t = G + 8 + 2 * q
                E(f"v_cvt_pk_bf16_f32 v{t}, v{G+4*q}, v{G+4*q+1}")
                E(f"v_cvt_pk_bf16_f32 v{t+1}, v{G+4*q+2}, v{G+4*q+3}")
                E(f"v_xor_b32 v{G+12+q}, {gg<<4}, v7")
                E(f"ds_write_b64 v{G+12+q}, v[{t}:{t+1}] offset:{bn*2048}")
    E("s_waitcnt lgkmcnt(0)")
    for i in range(4):
        E(f"ds_read_b128 v[{ET+4*i}:{ET+4*i+3}], v8 offset:{i*1024}")
    for i in range(4):
        E(f"s_waitcnt lgkmcnt({3-i})")
        E(f"buffer_store_dwordx4 v[{ET+4*i}:{ET+4*i+3}], v9, s[16:19], s45 offen")
        E(f"s_add_u32 s45, s45, {16*LDZ}")
    if "stamp" in EXP:
        E("s_memtime s[90:91]")
        E("s_waitcnt lgkmcnt(0)")
        E("s_cmp_eq_u32 s50, 0")
        E("s_cselect_b32 s70, s90, s70")
        E("s_cmp_eq_u32 s50, 1")
        E("s_cselect_b32 s74, s90, s74")
        E("s_cmp_eq_u32 s50, 2")
        E("s_cselect_b32 s78, s90, s78")
    E("s_add_u32 s50, s50, 1")
    E("s_cmp_lt_u32 s50, s48")
    E("s_cbranch_scc1 L_s1c_tile")
    if "stamp" in EXP:
        NSTAMP[0] = 8
        E("s_waitcnt vmcnt(0)")
        stamp()
        stamp_flush(16)
    rt_end(0)
    E("s_endpgm")

    E("L_s1_loader:")
    E("s_sub_u32 s3, s3, 4")
    E("s_lshl_b32 s28, s3, 12")
    E("s_mov_b32 s24, 0")
    E(f"s_cmp_ge_u32 s2, {NBIG}")
    E("s_cbranch_scc1 L_s1l_small")
    E("s_and_b32 s40, s2, 7")
    E("s_lshr_b32 s41, s2, 5")
    E("s_lshl_b32 s41, s41, 3")
    E("s_add_u32 s40, s40, s41")
    E("s_lshr_b32 s41, s2, 3")
    E("s_and_b32 s41, s41, 3")
    E("s_lshl_b32 s42, s41, 7")
    E("s_lshl_b32 s43, s3, 5")
    E("s_add_u32 s42, s42, s43")
    E("s_lshl_b32 s42, s42, 12")
    E(f"s_add_u32 s43, s42, {XNT_OFF}")
    add64(38, "s4", "s5", "s43")
    E(f"s_sub_u32 s43, {XN_SZ}, s42")
    srd(8, "s38", "s39", "s43")
    E("s_cmp_ge_u32 s40, 16")
    E("s_cselect_b32 s6, s32, s6")
    E("s_cselect_b32 s7, s33, s7")
    E("s_and_b32 s45, s40, 15")
    E("s_lshl_b32 s42, s45, 7")
    E("s_lshl_b32 s43, s3, 5")
    E("s_add_u32 s42, s42, s43")
    E("s_lshl_b32 s42, s42, 12")
    add64(38, "s6", "s7", "s42")
    E(f"s_sub_u32 s43, {S_*S_*2}, s42")
    srd(12, "s38", "s39", "s43")
    E("s_movk_i32 s29, 4096")
    dma_setup("s29")
    L = g.L
    if "kwrap" in EXP:
        g.wrap = 1023
    if "nokrot" not in EXP:
        E("s_lshl_b32 s24, s41, 10")
        g.wrap = 4095
    for st in range(NS - 1):
        g.issue(st)
    E("s_mov_b32 s26, 7")
    if "lstamp" in EXP:
        E("s_mov_b32 s70, 0")
        E("s_memtime s[64:65]")
        E("s_waitcnt lgkmcnt(0)")
    E("L_s1l_big_loop:")
    for s in range(NS):
        E(f"s_waitcnt vmcnt({(NS-2)*L if 'shallow' not in EXP else L})")
        if "lstamp" in EXP:
            E("s_memtime s[66:67]")
            E("s_waitcnt lgkmcnt(0)")
            E("s_sub_u32 s68, s66, s64")
            E("s_mov_b32 m0, s70")
            E("v_writelane_b32 v40, s68, m0")
            E("s_add_u32 s70, s70, 1")
        E("s_barrier")
        if "lstamp" in EXP:
            E("s_memtime s[66:67]")
            E("s_waitcnt lgkmcnt(0)")
            E("s_sub_u32 s68, s66, s64")
            E("s_mov_b32 m0, s70")
            E("v_writelane_b32 v41, s68, m0")
        g.issue((s + NS - 1) % NS)
    E("s_sub_u32 s26, s26, 1")
    E("s_cmp_lg_u32 s26, 0")
    E("s_cbranch_scc1 L_s1l_big_loop")
    E("L_s1l_tail:")
    E(f"s_waitcnt vmcnt({2*L})")
    E("s_barrier")
    g.issue(3)
    E(f"s_waitcnt vmcnt({2*L})")
    E("s_barrier")
    E(f"s_waitcnt vmcnt({L})")
    E("s_barrier")
    E("s_waitcnt vmcnt(0)")
    E("s_barrier")
    if "lstamp" in EXP:
        E(f"s_cmp_ge_u32 s2, {NBIG}")
        E("s_cbranch_scc1 L_ls_skip")
        E("s_cmp_lg_u32 s3, 0")
        E("s_cbranch_scc1 L_ls_skip")
        E(f"s_add_u32 s52, s4, {0x1C00000}")
        E("s_addc_u32 s53, s5, 0")
        E("s_and_b32 s53, s53, 0xffff")
        E("s_mov_b32 s54, 0x100000")
        E("s_mov_b32 s55, 0x00020000")
        E("v_lshlrev_b32 v2, 2, v1")
        E("s_lshl_b32 s56, s2, 9")
        E("buffer_store_dword v40, v2, s[52:55], s56 offen")
        E("buffer_store_dword v41, v2, s[52:55], s56 offen offset:256")
        E("L_ls_skip:")
    E("s_endpgm")

    def small_srds():
        s1_small_tile("s50")
        E("s_lshl_b32 s42, s40, 7")
        E("s_lshl_b32 s43, s3, 5")
        E("s_add_u32 s42, s42, s43")
        E("s_lshl_b32 s42, s42, 10")
        E(f"s_add_u32 s43, s42, {WGU_OFF}")
        add64(38, "s4", "s5", "s43")
        E(f"s_sub_u32 s43, {WGU_SZ}, s42")
        srd(8, "s38", "s39", "s43")
        E("s_lshl_b32 s42, s41, 7")
        E("s_lshl_b32 s43, s3, 5")
        E("s_add_u32 s42, s42, s43")
        E("s_lshl_b32 s42, s42, 10")
        E(f"s_add_u32 s43, s42, {XN_OFF}")
        add64(38, "s4", "s5", "s43")
        E(f"s_sub_u32 s43, {XN_SZ}, s42")
        srd(12, "s38", "s39", "s43")
        E("s_mov_b32 s24, 0")

    E("L_s1l_small:")
    if "onlybig" in EXP:
        for _ in range(2):
            pass
    E("s_mov_b32 s50, 0")
    small_srds()
    E("s_movk_i32 s29, 1024")
    dma_setup("s29")
    for st in range(NS - 1):
        g.issue(st)
    E("s_lshl_b32 s26, s48, 1")
    E("s_sub_u32 s26, s26, 1")
    E("L_s1l_small_loop:")
    for s in range(NS):
        E(f"s_waitcnt vmcnt({(NS-2)*L})")
        E("s_barrier")
        if s == 1:
            E("s_cmp_lt_u32 s24, 1024")
            E("s_cbranch_scc1 L_s1l_same")
            E("s_add_u32 s50, s50, 1")
            small_srds()
            E("L_s1l_same:")
        g.issue((s + NS - 1) % NS)
    E("s_sub_u32 s26, s26, 1")
    E("s_cmp_lg_u32 s26, 0")
    E("s_cbranch_scc1 L_s1l_small_loop")
    E("s_branch L_s1l_tail")
    E("L_s1_done:")
    E("s_endpgm")


NST2 = 256


def gen_stage2():
    E(".p2align 8")
    E(".globl stage2_kernel")
    E(".type stage2_kernel,@function")
    E("stage2_kernel:")
    E(f"s_cmp_ge_u32 s2, {NST2}")
    E("s_cbranch_scc1 L_s2_done")
    E("s_load_dwordx2 s[4:5], s[0:1], 88")
    E("s_load_dwordx2 s[6:7], s[0:1], 0")
    E("s_load_dwordx2 s[32:33], s[0:1], 72")
    wave_ids()
    E("s_and_b32 s40, s2, 7")
    E("s_lshr_b32 s41, s2, 6")
    E("s_lshl_b32 s41, s41, 3")
    E("s_add_u32 s40, s40, s41")
    E("s_lshr_b32 s41, s2, 3")
    E("s_and_b32 s41, s41, 7")
    E("s_waitcnt lgkmcnt(0)")
    g = Gemm(1, 1, 2, [("s[8:11]", "s24", "s28", 0), ("s[8:11]", "s25", "s28", 4096)], 256, ["s24", "s25"])
    NSTEP = KZ // 128
    PD = 3
    E("s_cmp_ge_u32 s3, 4")
    E("s_cbranch_scc1 L_s2_loader")
    E("s_lshr_b32 s34, s3, 1")
    E("s_and_b32 s35, s3, 1")
    E("s_lshl_b32 s36, s34, 5")
    E("s_lshl_b32 s37, s35, 5")
    srd(20, "s6", "s7", XN_SZ)
    srd(16, "s32", "s33", XN_SZ)
    E("s_lshl_b32 s45, s40, 6")
    E("s_add_u32 s45, s45, s37")
    E("s_lshl_b32 s45, s45, 10")
    E("s_lshl_b32 s44, s41, 6")
    E("s_add_u32 s44, s44, s36")
    E("s_lshl_b32 s44, s44, 1")
    E("s_add_u32 s45, s45, s44")
    E("s_add_u32 s46, s45, 16384")
    E("v_lshrrev_b32 v2, 2, v1")
    E("v_lshlrev_b32 v2, 10, v2")
    E("v_and_b32 v3, 3, v1")
    E("v_lshlrev_b32 v3, 4, v3")
    E("v_add_u32 v9, v2, v3")
    E(f"buffer_load_dwordx4 v[{ET}:{ET+3}], v9, s[20:23], s45 offen")
    E(f"buffer_load_dwordx4 v[{ET+4}:{ET+7}], v9, s[20:23], s46 offen")
    frag_setup("s36", "s37")
    E("s_lshl_b32 s49, s3, 13")
    E(f"s_add_u32 s49, s49, {STG_OFF}")
    g.zero_acc()
    E("s_barrier")
    for u in range(PD):
        g.reads(0, u, u)
    for k in range(NSTEP):
        g.cons_step(k % NS, PD, "always" if k < NSTEP - 1 else None)
    E("s_nop 15")
    E("v_and_b32 v2, 31, v1")
    E("v_lshrrev_b32 v3, 1, v2")
    E("v_and_b32 v3, 7, v3")
    E("v_lshrrev_b32 v4, 5, v1")
    E("v_xor_b32 v3, v3, v4")
    E("v_lshlrev_b32 v3, 4, v3")
    E("v_lshlrev_b32 v2, 7, v2")
    E("v_add_u32 v2, v2, v3")
    E("v_add_u32 v2, s49, v2")
    for gg in range(4):
        E(f"v_xor_b32 v4, {gg<<5}, v2")
        E(f"ds_write_b128 v4, v[{ACC+4*gg}:{ACC+4*gg+3}]")
    E("v_lshrrev_b32 v2, 2, v1")
    E("v_and_b32 v3, 3, v1")
    E("v_lshlrev_b32 v3, 1, v3")
    E("v_lshrrev_b32 v4, 3, v1")
    E("v_xor_b32 v3, v3, v4")
    E("v_lshlrev_b32 v3, 4, v3")
    E("v_lshlrev_b32 v2, 7, v2")
    E("v_add_u32 v2, v2, v3")
    E("v_add_u32 v2, s49, v2")
    E("v_xor_b32 v3, 16, v2")
    E("s_waitcnt lgkmcnt(0)")
    R = ET + 8
    for i in range(2):
        E(f"ds_read_b128 v[{R+8*i}:{R+8*i+3}], v2 offset:{i*2048}")
        E(f"ds_read_b128 v[{R+8*i+4}:{R+8*i+7}], v3 offset:{i*2048}")
    E("s_waitcnt vmcnt(0) lgkmcnt(0)")
    for i in range(2):
        for j in range(4):
            x = ET + 4 * i + j
            E(f"v_lshlrev_b32 v4, 16, v{x}")
            E(f"v_and_b32 v5, 0xffff0000, v{x}")
            E(f"v_add_f32 v4, v4, v{R+8*i+2*j}")
            E(f"v_add_f32 v5, v5, v{R+8*i+2*j+1}")
            E(f"v_cvt_pk_bf16_f32 v{x}, v4, v5")
        E(f"buffer_store_dwordx4 v[{ET+4*i}:{ET+4*i+3}], v9, s[16:19], {'s45' if i == 0 else 's46'} offen")
    rt_end(1)
    E("s_endpgm")
    E("L_s2_loader:")
    E("s_sub_u32 s3, s3, 4")
    E("s_lshr_b32 s34, s3, 1")
    E("s_and_b32 s35, s3, 1")
    E("s_lshl_b32 s28, s3, 13")
    E(f"s_mul_i32 s42, s41, {64*LDZ}")
    E(f"s_add_u32 s42, s42, {V_OFF}")
    E(f"s_sub_u32 s46, {V_OFF + V_SZ}, s42")
    E(f"s_mul_i32 s43, s40, {64*LDZ}")
    E(f"s_add_u32 s43, s43, {Z_OFF}")
    E(f"s_sub_u32 s47, {Z_OFF + Z_SZ}, s43")
    E("s_cmp_eq_u32 s34, 1")
    E("s_cselect_b32 s42, s43, s42")
    E("s_cselect_b32 s46, s47, s46")
    add64(38, "s4", "s5", "s42")
    srd(8, "s38", "s39", "s46")
    E("s_lshl_b32 s24, s35, 7")
    E(f"s_add_u32 s25, s24, {32*LDZ}")
    E(f"s_movk_i32 s29, {LDZ}")
    dma_setup("s29")
    L = g.L
    for st in range(NS - 1):
        g.issue(st)
    for k in range(NSTEP):
        vm = (min(k + NS - 2, NSTEP - 1) - k) * L
        if "shallow" in EXP:
            vm = min(vm, L)
        E(f"s_waitcnt vmcnt({vm})")
        E("s_barrier")
        if k + NS - 1 < NSTEP:
            g.issue((k + NS - 1) % NS)
    E("L_s2_done:")
    E("s_endpgm")


def desc(name, vgpr, sgpr):
    E(".p2align 6")
    E(f".amdhsa_kernel {name}")
    E(f"  .amdhsa_next_free_vgpr {vgpr}")
    E(f"  .amdhsa_next_free_sgpr {sgpr}")
    E(f"  .amdhsa_accum_offset {(vgpr+3)//4*4}")
    E("  .amdhsa_group_segment_fixed_size 0")
    E("  .amdhsa_kernarg_size 96")
    E("  .amdhsa_user_sgpr_count 2")
    E("  .amdhsa_user_sgpr_kernarg_segment_ptr 1")
    E("  .amdhsa_system_sgpr_workgroup_id_x 1")
    E("  .amdhsa_float_denorm_mode_32 3")
    E(".end_amdhsa_kernel")


def main():
    hdr = open(f"cdna_kernels/{NAME}.s.ref").read().split("\n")
    for line in hdr:
        if line.startswith(";") and "@launch" not in line and "Override launch" not in line and "grid=ceil" not in line:
            E(line)
        elif not line.startswith(";"):
            break
    E(f"; @launch kernel=prep_kernel grid=({NPREP},1,1) block=(256,1,1) lds=16384")
    E(f"; @launch kernel=stage1_kernel grid=({NST1},1,1) block=(512,1,1) lds={NS*STAGE+32768}")
    E(f"; @launch kernel=stage2_kernel grid=({NST2},1,1) block=(512,1,1) lds={NS*STAGE+32768}")
    E('.amdgcn_target "amdgcn-amd-amdhsa--gfx950"')
    E(".text")
    gen_prep()
    gen_stage1()
    gen_stage2()
    E('.section .rodata,"a"')
    desc("prep_kernel", 160, 100)
    desc("stage1_kernel", 200, 100)
    desc("stage2_kernel", 200, 100)
    open(os.environ.get("OUT", f"cdna_kernels/{NAME}.s"), "w").write("\n".join(out) + "\n")


if __name__ == "__main__":
    main()
```

```python
import struct, os

EXP = os.environ.get("EXP", "")
NAME = "parallel_sum__spectral_fnet__geglu_ffn__prompt"
S_, D_, F_ = 2048, 512, 1376
FP = 1408
KZ = 2432
LDZ = KZ * 2
LDW = F_ * 2
XN_OFF = 0x000000
V_OFF = 0x200000
Z_OFF = 0x500000
XN_SZ = S_ * D_ * 2
V_SZ = D_ * LDZ
Z_SZ = S_ * LDZ

out = []


def E(s=""):
    out.append(s)


def f32(x):
    return "0x%08x" % struct.unpack("<I", struct.pack("<f", x))[0]


def srd(reg, lo, hi, size):
    E(f"s_mov_b32 s{reg}, {lo}")
    E(f"s_and_b32 s{reg+1}, {hi}, 0xffff")
    E(f"s_mov_b32 s{reg+2}, {size}")
    E(f"s_mov_b32 s{reg+3}, 0x00020000")


def add64(dlo, slo, shi, off):
    E(f"s_add_u32 s{dlo}, {slo}, {off}")
    E(f"s_addc_u32 s{dlo+1}, {shi}, 0")


NRT = [0]


def rt_begin():
    if "rt" not in EXP:
        return
    E("s_memrealtime s[92:93]")
    E("s_memtime s[96:97]")


def rt_end(slot):
    if "rt" not in EXP:
        return
    lab = f"L_rt{NRT[0]}"
    NRT[0] += 1
    E("s_waitcnt vmcnt(0) lgkmcnt(0)")
    E("s_memrealtime s[94:95]")
    E("s_memtime s[98:99]")
    E("s_cmp_lg_u32 s3, 0")
    E(f"s_cbranch_scc1 {lab}")
    E("s_load_dwordx2 s[60:61], s[0:1], 88")
    E("s_waitcnt lgkmcnt(0)")
    E(f"s_add_u32 s64, s60, {0x1E00000 + slot*0x10000}")
    E("s_addc_u32 s65, s61, 0")
    E("s_and_b32 s65, s65, 0xffff")
    E("s_mov_b32 s66, 0x10000")
    E("s_mov_b32 s67, 0x00020000")
    E("s_lshl_b32 s62, s2, 4")
    E("v_mov_b32 v2, s62")
    E("v_mov_b32 v4, s92")
    E("v_mov_b32 v5, s94")
    E("s_sub_u32 s62, s98, s96")
    E("v_mov_b32 v6, s62")
    E("v_mov_b32 v7, 0")
    E("buffer_store_dwordx4 v[4:7], v2, s[64:67], 0 offen")
    E(f"{lab}:")


def wave_ids():
    rt_begin()
    E("v_and_b32 v1, 63, v0")
    E("v_lshrrev_b32 v2, 6, v0")
    E("s_nop 0")
    E("v_readfirstlane_b32 s3, v2")
    E("s_nop 3")


N_LN = 256
N_TR = 88
N_CP = 16
N_PF = 44 if 'nopf' not in EXP else 0
NPREP = N_LN + N_TR + N_CP + N_PF


def gen_prep():
    E(".p2align 8")
    E(".globl prep_kernel")
    E(".type prep_kernel,@function")
    E("prep_kernel:")
    E(f"s_cmp_ge_u32 s2, {NPREP}")
    E("s_cbranch_scc1 L_prep_done")
    E("s_load_dwordx2 s[4:5], s[0:1], 88")
    wave_ids()
    E(f"s_cmp_lt_u32 s2, {N_LN}")
    E("s_cbranch_scc1 L_prep_ln")
    E(f"s_cmp_lt_u32 s2, {N_LN + N_TR}")
    E("s_cbranch_scc1 L_prep_tr")
    E(f"s_cmp_lt_u32 s2, {N_LN + N_TR + N_CP}")
    E("s_cbranch_scc1 L_prep_copy")
    E("s_load_dwordx2 s[6:7], s[0:1], 48")
    E("s_load_dwordx2 s[26:27], s[0:1], 56")
    E(f"s_sub_u32 s20, s2, {N_LN + N_TR + N_CP}")
    E("s_cmp_ge_u32 s20, 22")
    E("s_cselect_b32 s21, 22, 0")
    E("s_sub_u32 s20, s20, s21")
    E("s_waitcnt lgkmcnt(0)")
    E("s_cmp_eq_u32 s21, 22")
    E("s_cselect_b32 s6, s26, s6")
    E("s_cselect_b32 s7, s27, s7")
    srd(8, "s6", "s7", D_ * LDW)
    E("s_lshl_b32 s22, s20, 16")
    E("s_lshl_b32 s23, s3, 14")
    E("s_add_u32 s22, s22, s23")
    E("v_lshlrev_b32 v3, 4, v1")
    for i in range(16):
        E(f"buffer_load_dwordx4 v[{16+4*i}:{16+4*i+3}], v3, s[8:11], s22 offen offset:{(i%4)*1024}")
        if i % 4 == 3:
            E("s_add_u32 s22, s22, 4096")
    E("s_endpgm")

    NR = 2
    E("L_prep_ln:")
    E("s_load_dwordx2 s[6:7], s[0:1], 0")
    E("s_waitcnt lgkmcnt(0)")
    srd(8, "s6", "s7", XN_SZ)
    add64(24, "s4", "s5", XN_OFF)
    srd(12, "s24", "s25", XN_SZ)
    E("s_lshl_b32 s20, s2, 13")
    E("s_lshl_b32 s22, s3, 11")
    E("s_add_u32 s20, s20, s22")
    E("v_lshlrev_b32 v3, 4, v1")
    P0, X0, R0, M0r, T0, U0, W0 = 16, 32, 48, 52, 56, 60, 64
    for i in range(NR):
        E(f"buffer_load_dwordx4 v[{P0+4*i}:{P0+4*i+3}], v3, s[8:11], s20 offen offset:{i*1024}")
    for i in range(NR):
        E(f"s_waitcnt vmcnt({NR-1-i})")
        for j in range(4):
            E(f"v_lshlrev_b32 v{X0+8*i+2*j}, 16, v{P0+4*i+j}")
            E(f"v_and_b32 v{X0+8*i+2*j+1}, 0xffff0000, v{P0+4*i+j}")

    def wave_reduce(base):
        for ctl in ["row_shr:1 row_mask:0xf bank_mask:0xf bound_ctrl:0",
                    "row_shr:2 row_mask:0xf bank_mask:0xf bound_ctrl:0",
                    "row_shr:4 row_mask:0xf bank_mask:0xf bound_ctrl:0",
                    "row_shr:8 row_mask:0xf bank_mask:0xf bound_ctrl:0",
                    "row_bcast:15 row_mask:0xa bank_mask:0xf",
                    "row_bcast:31 row_mask:0xc bank_mask:0xf"]:
            E("s_nop 0")
            for i in range(NR):
                E(f"v_add_f32_dpp v{base+i}, v{base+i}, v{base+i} {ctl}")
        E("s_nop 0")
        for i in range(NR):
            E(f"v_readlane_b32 s{32+i}, v{base+i}, 63")
        E("s_nop 1")

    for i in range(NR):
        E(f"v_add_f32 v{R0+i}, v{X0+8*i}, v{X0+8*i+1}")
    for j in range(2, 8):
        for i in range(NR):
            E(f"v_add_f32 v{R0+i}, v{R0+i}, v{X0+8*i+j}")
    wave_reduce(R0)
    for i in range(NR):
        E(f"v_mov_b32 v{M0r+i}, s{32+i}")
    for i in range(NR):
        E(f"v_mul_f32 v{M0r+i}, {f32(1.0/512)}, v{M0r+i}")
    for j in range(8):
        for i in range(NR):
            E(f"v_sub_f32 v{T0+i}, v{X0+8*i+j}, v{M0r+i}")
        for i in range(NR):
            if j == 0:
                E(f"v_mul_f32 v{R0+i}, v{T0+i}, v{T0+i}")
            else:
                E(f"v_fmac_f32 v{R0+i}, v{T0+i}, v{T0+i}")
    wave_reduce(R0)
    for i in range(NR):
        E(f"v_mov_b32 v{T0+i}, s{32+i}")
    for i in range(NR):
        E(f"v_mul_f32 v{T0+i}, {f32(1.0/512)}, v{T0+i}")
    for i in range(NR):
        E(f"v_cvt_pk_bf16_f32 v{U0+i}, v{T0+i}, v{M0r+i}")
    for i in range(NR):
        E(f"v_lshlrev_b32 v{T0+i}, 16, v{U0+i}")
        E(f"v_and_b32 v{M0r+i}, 0xffff0000, v{U0+i}")
    for i in range(NR):
        E(f"v_add_f32 v{T0+i}, {f32(1e-5)}, v{T0+i}")
    for i in range(NR):
        E(f"v_cvt_pk_bf16_f32 v{U0+i}, v{T0+i}, v{T0+i}")
    for i in range(NR):
        E(f"v_lshlrev_b32 v{T0+i}, 16, v{U0+i}")
    for i in range(NR):
        E(f"v_sqrt_f32 v{T0+i}, v{T0+i}")
    E("s_nop 0")
    for i in range(NR):
        E(f"v_cvt_pk_bf16_f32 v{U0+i}, v{T0+i}, v{T0+i}")
    for i in range(NR):
        E(f"v_lshlrev_b32 v{T0+i}, 16, v{U0+i}")
    for i in range(NR):
        E(f"v_rcp_f32 v{W0+i}, v{T0+i}")
    E("s_nop 0")
    for i in range(NR):
        for j in range(0, 8, 2):
            a_, b_ = X0 + 8 * i + j, X0 + 8 * i + j + 1
            E(f"v_sub_f32 v{a_}, v{a_}, v{M0r+i}")
            E(f"v_sub_f32 v{b_}, v{b_}, v{M0r+i}")
            E(f"v_cvt_pk_bf16_f32 v4, v{a_}, v{b_}")
            E(f"v_lshlrev_b32 v{a_}, 16, v4")
            E(f"v_and_b32 v{b_}, 0xffff0000, v4")
            E(f"v_mul_f32 v5, v{a_}, v{W0+i}")
            E(f"v_mul_f32 v6, v{b_}, v{W0+i}")
            E(f"v_fma_f32 v7, -v5, v{T0+i}, v{a_}")
            E(f"v_fma_f32 v8, -v6, v{T0+i}, v{b_}")
            E(f"v_fma_f32 v5, v7, v{W0+i}, v5")
            E(f"v_fma_f32 v6, v8, v{W0+i}, v6")
            E(f"v_cvt_pk_bf16_f32 v{P0+4*i+j//2}, v5, v6")
    for i in range(NR):
        E(f"buffer_store_dwordx4 v[{P0+4*i}:{P0+4*i+3}], v3, s[12:15], s20 offen offset:{i*1024}")
    E("s_endpgm")

    E("L_prep_tr:")
    E("s_load_dwordx2 s[28:29], s[0:1], 64")
    E(f"s_sub_u32 s20, s2, {N_LN}")
    E("s_waitcnt lgkmcnt(0)")
    E("s_lshr_b32 s22, s20, 2")
    E("s_and_b32 s23, s20, 3")
    srd(8, "s28", "s29", F_ * D_ * 2)
    add64(24, "s4", "s5", V_OFF)
    srd(12, "s24", "s25", V_SZ)
    E("v_lshrrev_b32 v3, 4, v1")
    E("v_and_b32 v4, 15, v1")
    E("v_lshlrev_b32 v5, 10, v3")
    E("v_lshlrev_b32 v6, 4, v4")
    E("v_add_u32 v5, v5, v6")
    E("s_lshl_b32 s24, s22, 6")
    E("s_lshl_b32 s25, s3, 4")
    E("s_add_u32 s24, s24, s25")
    E("s_lshl_b32 s24, s24, 10")
    E("s_lshl_b32 s25, s23, 8")
    E("s_add_u32 s24, s24, s25")
    E("v_and_b32 v8, 127, v0")
    E("s_lshl_b32 s31, s23, 7")
    E("v_add_u32 v8, s31, v8")
    E(f"s_movk_i32 s25, {LDZ}")
    E("v_mul_lo_u32 v8, v8, s25")
    E("s_lshl_b32 s31, s22, 7")
    E("s_add_u32 s31, s31, 2048")
    for i in range(4):
        E(f"buffer_load_dwordx4 v[{16+4*i}:{16+4*i+3}], v5, s[8:11], s24 offen")
        E("s_add_u32 s24, s24, 4096")
    E("v_lshlrev_b32 v9, 12, v2")
    E("v_lshlrev_b32 v10, 4, v1")
    E("v_add_u32 v9, v9, v10")
    E("v_lshrrev_b32 v10, 7, v0")
    E("v_lshlrev_b32 v11, 6, v10")
    E("v_add_u32 v8, v8, v11")
    E("v_lshlrev_b32 v10, 13, v10")
    E("v_and_b32 v11, 127, v0")
    E("v_lshlrev_b32 v11, 1, v11")
    E("v_add_u32 v10, v10, v11")
    for i in range(4):
        E(f"s_waitcnt vmcnt({3-i})")
        E(f"ds_write_b128 v9, v[{16+4*i}:{16+4*i+3}] offset:{i*1024}")
    E("s_waitcnt lgkmcnt(0)")
    E("s_barrier")
    for j in range(32):
        E(f"ds_read_u16 v{32+j}, v10 offset:{j*256}")
    for i in range(16):
        if i % 4 == 0:
            E(f"s_waitcnt lgkmcnt({min(15, 24 - 2*i)})")
        E(f"v_lshl_or_b32 v{32+i}, v{32+2*i+1}, 16, v{32+2*i}")
        if i % 4 == 3:
            E(f"buffer_store_dwordx4 v[{32+i-3}:{32+i}], v8, s[12:15], s31 offen offset:{(i//4)*16}")
    E("s_endpgm")

    E("L_prep_copy:")
    E("s_load_dwordx2 s[6:7], s[0:1], 24")
    E("s_load_dwordx2 s[26:27], s[0:1], 32")
    E(f"s_sub_u32 s20, s2, {N_LN + N_TR}")
    E("s_lshr_b32 s21, s20, 3")
    E("s_and_b32 s20, s20, 7")
    E("s_waitcnt lgkmcnt(0)")
    E("s_cmp_eq_u32 s21, 1")
    E("s_cselect_b32 s6, s26, s6")
    E("s_cselect_b32 s7, s27, s7")
    E("s_cselect_b32 s28, 0x80008000, 0")
    srd(8, "s6", "s7", D_ * D_ * 2)
    add64(24, "s4", "s5", V_OFF)
    srd(12, "s24", "s25", V_SZ)
    E("s_lshl_b32 s22, s20, 6")
    E("s_add_u32 s22, s22, s3")
    E("s_lshl_b32 s23, s22, 10")
    E(f"s_mul_i32 s24, s22, {LDZ}")
    E("s_lshl_b32 s25, s21, 10")
    E("s_add_u32 s24, s24, s25")
    E("v_lshlrev_b32 v3, 4, v1")
    for i in range(16):
        E(f"buffer_load_dwordx4 v[{16+4*i}:{16+4*i+3}], v3, s[8:11], s23 offen")
        E("s_add_u32 s23, s23, 4096")
    for i in range(16):
        E("s_waitcnt vmcnt(15)")
        for j in range(4):
            E(f"v_xor_b32 v{16+4*i+j}, s28, v{16+4*i+j}")
        E(f"buffer_store_dwordx4 v[{16+4*i}:{16+4*i+3}], v3, s[12:15], s24 offen")
        E(f"s_add_u32 s24, s24, {4*LDZ}")
    E("L_prep_done:")
    E("s_endpgm")


STAGE = 32768
NS = 4
STG_OFF = NS * STAGE
VOFF = 10
VOFA = 16
VA = 16
VB = 24
VF = 32
ACC = 96
ET = 160


def dma_setup_nt(ld):
    E("v_lshrrev_b32 v2, 3, v1")
    E("v_lshrrev_b32 v3, 4, v1")
    E("v_and_b32 v4, 7, v1")
    E(f"s_movk_i32 s29, {ld}")
    for i in range(4):
        E(f"v_add_u32 v5, {8*i}, v2")
        E("v_mul_lo_u32 v5, v5, s29")
        E(f"v_add_u32 v6, {4*i}, v3")
        E("v_and_b32 v6, 7, v6")
        E("v_xor_b32 v6, v6, v4")
        E("v_lshlrev_b32 v6, 4, v6")
        E("v_add_u32 v5, v5, v6")
        if i:
            E(f"v_subrev_u32 v5, {i*1024}, v5")
        E(f"v_mov_b32 v{VOFF+i}, v5")


def dma_setup_tr256(ld):
    E("v_lshrrev_b32 v2, 4, v1")
    E("v_and_b32 v3, 15, v1")
    E("v_lshlrev_b32 v4, 2, v2")
    E("v_xor_b32 v3, v3, v4")
    E("v_lshlrev_b32 v3, 4, v3")
    E(f"s_movk_i32 s29, {ld}")
    for i in range(4):
        E(f"v_add_u32 v5, {4*i}, v2")
        E("v_mul_lo_u32 v5, v5, s29")
        E("v_add_u32 v5, v5, v3")
        if i:
            E(f"v_subrev_u32 v5, {i*1024}, v5")
        E(f"v_mov_b32 v{VOFA+i}, v5")


def dma_setup_tr128(ld):
    E("v_lshrrev_b32 v2, 3, v1")
    E("v_and_b32 v3, 7, v1")
    E("v_lshrrev_b32 v4, 4, v1")
    E("v_and_b32 v4, 1, v4")
    E("v_lshlrev_b32 v4, 2, v4")
    E("v_xor_b32 v3, v3, v4")
    E("v_lshlrev_b32 v3, 4, v3")
    E(f"s_movk_i32 s29, {ld}")
    for i in range(4):
        E(f"v_add_u32 v5, {8*i}, v2")
        E("v_mul_lo_u32 v5, v5, s29")
        E("v_add_u32 v5, v5, v3")
        if i:
            E(f"v_subrev_u32 v5, {i*1024}, v5")
        E(f"v_mov_b32 v{VOFA+i}, v5")


def frag_setup_nt(base_reg, wrow):
    E("v_and_b32 v2, 31, v1")
    E("v_lshrrev_b32 v3, 5, v1")
    E("v_lshrrev_b32 v4, 1, v2")
    E("v_and_b32 v4, 7, v4")
    E("v_xor_b32 v4, v4, v3")
    E("v_lshlrev_b32 v4, 4, v4")
    E("v_lshlrev_b32 v5, 7, v2")
    E("v_add_u32 v4, v4, v5")
    E(f"s_lshl_b32 s30, {wrow}, 7")
    for j in range(4):
        E(f"v_xor_b32 v5, {j*32}, v4")
        E(f"v_add_u32 v{base_reg+j}, s30, v5")
        E(f"v_add_u32 v{base_reg+4+j}, 0x10000, v{base_reg+j}")


def frag_setup_tr256(wm):
    E("v_and_b32 v2, 15, v1")
    E("v_lshrrev_b32 v2, 2, v2")
    E("v_lshrrev_b32 v3, 5, v1")
    E("v_lshlrev_b32 v3, 3, v3")
    E("v_add_u32 v3, v3, v2")
    E("v_lshlrev_b32 v3, 8, v3")
    E("v_lshrrev_b32 v4, 4, v1")
    E("v_and_b32 v4, 1, v4")
    E("v_lshlrev_b32 v4, 1, v4")
    E("v_and_b32 v5, 3, v1")
    E("v_lshrrev_b32 v5, 1, v5")
    E("v_add_u32 v4, v4, v5")
    E(f"s_lshl_b32 s30, {wm}, 3")
    E("v_add_u32 v4, s30, v4")
    E("v_lshlrev_b32 v5, 2, v2")
    E("v_xor_b32 v4, v4, v5")
    E("v_lshlrev_b32 v4, 4, v4")
    E("v_add_u32 v3, v3, v4")
    E("v_and_b32 v4, 1, v1")
    E("v_lshlrev_b32 v4, 3, v4")
    E(f"v_add_u32 v{VA}, v3, v4")
    E(f"v_xor_b32 v{VA+1}, 64, v{VA}")
    E(f"v_add_u32 v{VA+2}, 0x10000, v{VA}")
    E(f"v_add_u32 v{VA+3}, 0x10000, v{VA+1}")


def frag_setup_tr128(wm):
    E("v_and_b32 v2, 15, v1")
    E("v_lshrrev_b32 v2, 2, v2")
    E("v_lshrrev_b32 v3, 5, v1")
    E("v_lshlrev_b32 v3, 3, v3")
    E("v_add_u32 v3, v3, v2")
    E("v_lshlrev_b32 v3, 7, v3")
    E("v_lshrrev_b32 v4, 4, v1")
    E("v_and_b32 v4, 1, v4")
    E("v_lshlrev_b32 v4, 1, v4")
    E("v_and_b32 v5, 3, v1")
    E("v_lshrrev_b32 v5, 1, v5")
    E("v_add_u32 v4, v4, v5")
    E(f"s_lshl_b32 s30, {wm}, 2")
    E("v_add_u32 v4, s30, v4")
    E("v_lshrrev_b32 v5, 3, v1")
    E("v_and_b32 v5, 1, v5")
    E("v_lshlrev_b32 v5, 2, v5")
    E("v_xor_b32 v4, v4, v5")
    E("v_lshlrev_b32 v4, 4, v4")
    E("v_add_u32 v3, v3, v4")
    E("v_and_b32 v4, 1, v1")
    E("v_lshlrev_b32 v4, 3, v4")
    E(f"v_add_u32 v{VA}, v3, v4")
    E(f"v_add_u32 v{VA+1}, 0x10000, v{VA}")


class Gemm:
    def __init__(self, BM, BN, KP, amode):
        self.BM, self.BN, self.KP, self.amode = BM, BN, KP, amode
        self.nsub = 4 * KP
        self.fsz = (BM + BN) * 4
        self.panel = 16384 // KP
        self.nr = BN + (BM if amode == "nt" else 2 * BM)

    def dma(self, slot, groups):
        for (sr, so, mb, mi, vo) in groups:
            E(f"s_add_u32 m0, {mb}, {slot*STAGE + mi}")
            E("s_nop 0")
            for i in range(4):
                E(f"buffer_load_dwordx4 v{vo+i}, {sr}, {so} offen offset:{i*1024} lds")

    def reads(self, slot, sub, st):
        p, j = sub // 4, sub % 4
        half = slot // 2
        base = (slot % 2) * STAGE
        for bm in range(self.BM):
            r = VF + st * self.fsz + bm * 4
            if self.amode == "nt":
                E(f"ds_read_b128 v[{r}:{r+3}], v{VA+half*4+j} offset:{base + p*self.panel + bm*4096}")
            elif self.amode == "tr256":
                for q in range(2):
                    E(f"ds_read_b64_tr_b16 v[{r+2*q}:{r+2*q+1}], v{VA+half*2+bm} offset:{base + j*4096 + q*1024}")
            else:
                for q in range(2):
                    E(f"ds_read_b64_tr_b16 v[{r+2*q}:{r+2*q+1}], v{VA+half} offset:{base + bm*8192 + j*2048 + q*512}")
        for bn in range(self.BN):
            r = VF + st * self.fsz + self.BM * 4 + bn * 4
            E(f"ds_read_b128 v[{r}:{r+3}], v{VB+half*4+j} offset:{base + 16384 + p*self.panel + bn*4096}")

    def mfmas(self, st):
        for bm in range(self.BM):
            for bn in range(self.BN):
                a = VF + st * self.fsz + bm * 4
                b = VF + st * self.fsz + self.BM * 4 + bn * 4
                c = ACC + (bm * self.BN + bn) * 16
                E(f"v_mfma_f32_32x32x16_bf16 v[{c}:{c+15}], v[{a}:{a+3}], v[{b}:{b+3}], v[{c}:{c+15}]")

    def zero_acc(self):
        for r in range(ACC, ACC + self.BM * self.BN * 16):
            E(f"v_mov_b32 v{r}, 0")

    def cons_step(self, slot, PD, nxt):
        n = self.nsub
        nslot = (slot + 1) % NS
        for u in range(n):
            st = u % 4
            t = u + PD
            if t < n:
                self.reads(slot, t, t % 4)
                E(f"s_waitcnt lgkmcnt({PD*self.nr})")
            else:
                if t == n:
                    E("s_waitcnt lgkmcnt(0)")
                    if nxt == "always":
                        E("s_barrier")
                    elif nxt is not None:
                        E("s_cmp_eq_u32 s27, 0")
                        E(f"s_cbranch_scc1 {nxt}_a")
                        E("s_barrier")
                if nxt is not None:
                    self.reads(nslot, t - n, t % 4)
                    if nxt != "always":
                        E(f"{nxt}_{'a' if t == n else 'b%d' % t}:")
            self.mfmas(st)
            if t >= n and t + 1 < n + PD and nxt not in (None, "always"):
                E("s_cmp_eq_u32 s27, 0")
                E(f"s_cbranch_scc1 {nxt}_b{t+1}")


NBIG = 128
NST1 = 256


def s1_big_tile():
    E("s_and_b32 s40, s2, 7")
    E("s_lshr_b32 s41, s2, 5")
    E("s_lshl_b32 s41, s41, 3")
    E("s_add_u32 s40, s40, s41")
    E("s_lshr_b32 s41, s2, 3")
    E("s_and_b32 s41, s41, 3")


def s1_small_tile(ti):
    E(f"s_sub_u32 s42, s2, {NBIG}")
    E("s_and_b32 s43, s42, 7")
    E("s_lshr_b32 s42, s42, 3")
    E(f"s_lshl_b32 s44, {ti}, 4")
    E("s_add_u32 s42, s42, s44")
    E("s_lshr_b32 s40, s42, 1")
    E("s_and_b32 s42, s42, 1")
    E("s_lshl_b32 s41, s43, 1")
    E("s_add_u32 s41, s41, s42")


def korder():
    if "korder0" in EXP:
        return [(dq, j) for dq in range(4) for j in range(8)]
    seq = [(0, 0), (0, 1)]
    for j in range(6):
        seq += [(1, j), (0, j + 2)]
    seq += [(1, 6), (1, 7)]
    seq += [(dq, j) for dq in (2, 3) for j in range(8)]
    return seq


def gen_stage1():
    E(".p2align 8")
    E(".globl stage1_kernel")
    E(".type stage1_kernel,@function")
    E("stage1_kernel:")
    E(f"s_cmp_ge_u32 s2, {NST1}")
    E("s_cbranch_scc1 L_s1_done")
    E("s_load_dwordx2 s[4:5], s[0:1], 88")
    E("s_load_dwordx2 s[6:7], s[0:1], 8")
    E("s_load_dwordx2 s[32:33], s[0:1], 16")
    E("s_load_dwordx2 s[56:57], s[0:1], 48")
    E("s_load_dwordx2 s[58:59], s[0:1], 56")
    wave_ids()
    E(f"s_sub_u32 s48, s2, {NBIG}")
    E("s_lshr_b32 s48, s48, 3")
    E("s_cmp_lt_u32 s48, 12")
    E("s_cselect_b32 s48, 3, 2")
    E("s_waitcnt lgkmcnt(0)")
    E("s_cmp_ge_u32 s3, 4")
    E("s_cbranch_scc1 L_s1_loader")

    gb = Gemm(2, 2, 1, "tr256")
    gs = Gemm(2, 2, 1, "tr128")
    PD = 2
    E("s_lshr_b32 s34, s3, 1")
    E("s_and_b32 s35, s3, 1")
    E("s_lshl_b32 s36, s34, 6")
    E("s_lshl_b32 s37, s35, 6")
    add64(38, "s4", "s5", Z_OFF)
    srd(16, "s38", "s39", Z_SZ)
    frag_setup_nt(VB, "s37")
    E("s_lshl_b32 s49, s3, 13")
    E(f"s_add_u32 s49, s49, {STG_OFF}")
    E(f"s_cmp_ge_u32 s2, {NBIG}")
    E("s_cbranch_scc1 L_s1c_small")

    frag_setup_tr256("s34")
    gb.zero_acc()
    E("s_barrier")
    for u in range(PD):
        gb.reads(0, u, u)
    E("s_mov_b32 s27, 7")
    E("L_s1c_big_loop:")
    for s in range(NS):
        gb.cons_step(s, PD, "always" if s < NS - 1 else "L_s1cb")
    E("s_sub_u32 s27, s27, 1")
    E("s_cmp_ge_i32 s27, 0")
    E("s_cbranch_scc1 L_s1c_big_loop")
    E("s_nop 15")
    s1_big_tile()
    E("s_cmp_ge_u32 s40, 16")
    E("s_cselect_b32 s44, 512, 0")
    E("s_and_b32 s45, s40, 15")
    E("s_lshl_b32 s45, s45, 7")
    E("s_add_u32 s45, s45, s37")
    E(f"s_mul_i32 s45, s45, {LDZ}")
    E("s_lshl_b32 s41, s41, 7")
    E("s_add_u32 s44, s44, s41")
    E("s_add_u32 s44, s44, s36")
    E("s_lshl_b32 s44, s44, 1")
    E("s_add_u32 s45, s45, s44")
    E("v_and_b32 v2, 31, v1")
    E("v_lshrrev_b32 v3, 1, v2")
    E("v_and_b32 v3, 7, v3")
    E("v_lshlrev_b32 v3, 4, v3")
    E("v_lshlrev_b32 v2, 7, v2")
    E("v_add_u32 v2, v2, v3")
    E("v_lshrrev_b32 v3, 5, v1")
    E("v_lshlrev_b32 v3, 3, v3")
    E("v_add_u32 v2, v2, v3")
    E("v_add_u32 v2, s49, v2")
    n = 0
    for bm in range(2):
        for gg in range(4):
            ch = bm * 4 + gg
            E(f"v_xor_b32 v4, {ch<<4}, v2")
            for bn in range(2):
                c = ACC + (bm * 2 + bn) * 16
                t = ET + (n % 8) * 2
                n += 1
                E(f"v_cvt_pk_bf16_f32 v{t}, v{c+4*gg}, v{c+4*gg+1}")
                E(f"v_cvt_pk_bf16_f32 v{t+1}, v{c+4*gg+2}, v{c+4*gg+3}")
                E(f"ds_write_b64 v4, v[{t}:{t+1}] offset:{bn*4096}")
    E("v_lshrrev_b32 v2, 3, v1")
    E("v_and_b32 v3, 7, v1")
    E("v_lshrrev_b32 v4, 4, v1")
    E("v_xor_b32 v4, v4, v3")
    E("v_lshlrev_b32 v4, 4, v4")
    E("v_lshlrev_b32 v5, 7, v2")
    E("v_add_u32 v4, v4, v5")
    E("v_add_u32 v4, s49, v4")
    E("v_xor_b32 v5, 64, v4")
    E(f"s_movk_i32 s29, {LDZ}")
    E("v_mul_lo_u32 v6, v2, s29")
    E("v_lshlrev_b32 v3, 4, v3")
    E("v_add_u32 v6, v6, v3")
    E("s_waitcnt lgkmcnt(0)")
    for i in range(8):
        E(f"ds_read_b128 v[{ET+4*i}:{ET+4*i+3}], v{4 + (i&1)} offset:{i*1024}")
    for i in range(8):
        E(f"s_waitcnt lgkmcnt({7-i})")
        E(f"buffer_store_dwordx4 v[{ET+4*i}:{ET+4*i+3}], v6, s[16:19], s45 offen")
        E(f"s_add_u32 s45, s45, {8*LDZ}")
    rt_end(0)
    E("s_endpgm")

    E("L_s1c_small:")
    frag_setup_tr128("s34")
    CK = -2.0 * 0.7978845608028654 * 1.4426950408889634
    E(f"s_mov_b32 s46, {f32(0.044715*CK)}")
    E(f"s_mov_b32 s47, {f32(0.044715*CK)}")
    E(f"v_mov_b32 v14, {f32(CK)}")
    E(f"v_mov_b32 v15, {f32(CK)}")
    E("s_mov_b32 s54, 1.0")
    E("s_mov_b32 s55, 1.0")
    E("s_mov_b32 s50, 0")
    E("s_lshl_b32 s27, s48, 1")
    E("s_sub_u32 s27, s27, 1")
    E("v_and_b32 v2, 31, v1")
    E("v_lshrrev_b32 v3, 2, v2")
    E("v_and_b32 v3, 3, v3")
    E("v_lshlrev_b32 v3, 4, v3")
    E("v_lshlrev_b32 v2, 6, v2")
    E("v_add_u32 v2, v2, v3")
    E("v_lshrrev_b32 v3, 5, v1")
    E("v_lshlrev_b32 v3, 3, v3")
    E("v_add_u32 v2, v2, v3")
    E("v_add_u32 v7, s49, v2")
    E("v_lshrrev_b32 v2, 2, v1")
    E("v_and_b32 v3, 3, v1")
    E("v_lshrrev_b32 v4, 4, v1")
    E("v_and_b32 v4, 3, v4")
    E("v_xor_b32 v4, v4, v3")
    E("v_lshlrev_b32 v4, 4, v4")
    E("v_lshlrev_b32 v5, 6, v2")
    E("v_add_u32 v4, v4, v5")
    E("v_add_u32 v8, s49, v4")
    E(f"s_movk_i32 s29, {LDZ}")
    E("v_mul_lo_u32 v9, v2, s29")
    E("v_lshlrev_b32 v3, 4, v3")
    E("v_add_u32 v9, v9, v3")
    E("s_barrier")
    for u in range(PD):
        gs.reads(0, u, u)
    E("L_s1c_tile:")
    gs.zero_acc()
    for rep in range(2):
        for s in range(NS):
            gs.cons_step(s, PD, "always" if s < NS - 1 else f"L_s1cs{rep}")
        E("s_sub_u32 s27, s27, 1")
    E("s_nop 15")
    s1_small_tile("s50")
    E("s_lshl_b32 s45, s41, 7")
    E("s_add_u32 s45, s45, s37")
    E(f"s_mul_i32 s45, s45, {LDZ}")
    E("s_lshl_b32 s44, s40, 1")
    E("s_add_u32 s44, s44, s34")
    E("s_lshl_b32 s44, s44, 6")
    E("s_add_u32 s45, s45, s44")
    E("s_add_u32 s45, s45, 2048")
    for bn in range(2):
        cg = ACC + (0 * 2 + bn) * 16
        cu = ACC + (1 * 2 + bn) * 16
        for gp in range(2):
            G = ET + 16 * gp
            for q in range(2):
                gg = gp * 2 + q
                T = G + 4 * q
                for r in range(0, 4, 2):
                    E(f"v_pk_mul_f32 v[{T+r}:{T+r+1}], v[{cg+4*gg+r}:{cg+4*gg+r+1}], v[{cg+4*gg+r}:{cg+4*gg+r+1}]")
            for q in range(2):
                T = G + 4 * q
                for r in range(0, 4, 2):
                    E(f"v_pk_fma_f32 v[{T+r}:{T+r+1}], v[{T+r}:{T+r+1}], s[46:47], v[14:15]")
            for q in range(2):
                gg = gp * 2 + q
                T = G + 4 * q
                for r in range(0, 4, 2):
                    E(f"v_pk_mul_f32 v[{T+r}:{T+r+1}], v[{T+r}:{T+r+1}], v[{cg+4*gg+r}:{cg+4*gg+r+1}]")
            for r in range(8):
                E(f"v_exp_f32 v{G+r}, v{G+r}")
            for r in range(0, 8, 2):
                E(f"v_pk_add_f32 v[{G+r}:{G+r+1}], v[{G+r}:{G+r+1}], s[54:55]")
            for r in range(8):
                E(f"v_rcp_f32 v{G+r}, v{G+r}")
            for q in range(2):
                gg = gp * 2 + q
                T = G + 8 + 4 * q
                for r in range(0, 4, 2):
                    E(f"v_pk_mul_f32 v[{T+r}:{T+r+1}], v[{cg+4*gg+r}:{cg+4*gg+r+1}], v[{cu+4*gg+r}:{cu+4*gg+r+1}]")
            for r in range(0, 8, 2):
                E(f"v_pk_mul_f32 v[{G+r}:{G+r+1}], v[{G+r}:{G+r+1}], v[{G+8+r}:{G+8+r+1}]")
            for q in range(2):
                gg = gp * 2 + q
                t = G + 8 + 2 * q
                E(f"v_cvt_pk_bf16_f32 v{t}, v{G+4*q}, v{G+4*q+1}")
                E(f"v_cvt_pk_bf16_f32 v{t+1}, v{G+4*q+2}, v{G+4*q+3}")
                E(f"v_xor_b32 v{G+12+q}, {gg<<4}, v7")
                E(f"ds_write_b64 v{G+12+q}, v[{t}:{t+1}] offset:{bn*2048}")
    E("s_waitcnt lgkmcnt(0)")
    for i in range(4):
        E(f"ds_read_b128 v[{ET+4*i}:{ET+4*i+3}], v8 offset:{i*1024}")
    for i in range(4):
        E(f"s_waitcnt lgkmcnt({3-i})")
        E(f"buffer_store_dwordx4 v[{ET+4*i}:{ET+4*i+3}], v9, s[16:19], s45 offen")
        E(f"s_add_u32 s45, s45, {16*LDZ}")
    E("s_add_u32 s50, s50, 1")
    E("s_cmp_lt_u32 s50, s48")
    E("s_cbranch_scc1 L_s1c_tile")
    rt_end(0)
    E("s_endpgm")

    L = 8
    E("L_s1_loader:")
    E("s_sub_u32 s3, s3, 4")
    E("s_lshl_b32 s28, s3, 12")
    E(f"s_cmp_ge_u32 s2, {NBIG}")
    E("s_cbranch_scc1 L_s1l_small")
    s1_big_tile()
    E("s_lshl_b32 s42, s41, 8")
    E("s_lshl_b32 s43, s3, 14")
    E("s_add_u32 s42, s42, s43")
    E(f"s_add_u32 s43, s42, {XN_OFF}")
    add64(38, "s4", "s5", "s43")
    E(f"s_sub_u32 s43, {XN_SZ}, s42")
    srd(8, "s38", "s39", "s43")
    E("s_cmp_ge_u32 s40, 16")
    E("s_cselect_b32 s6, s32, s6")
    E("s_cselect_b32 s7, s33, s7")
    E("s_and_b32 s45, s40, 15")
    E("s_lshl_b32 s42, s45, 7")
    E("s_lshl_b32 s43, s3, 5")
    E("s_add_u32 s42, s42, s43")
    E("s_lshl_b32 s42, s42, 12")
    add64(38, "s6", "s7", "s42")
    E(f"s_sub_u32 s43, {S_*S_*2}, s42")
    srd(12, "s38", "s39", "s43")
    dma_setup_nt(4096)
    dma_setup_tr256(1024)
    grp = [("s[8:11]", "s24", "s28", 0, VOFA), ("s[12:15]", "s25", "s28", 16384, VOFF)]
    seq = korder()

    def big_issue(stage):
        dq, j = seq[stage]
        E(f"s_add_u32 s24, s41, {dq}")
        E("s_and_b32 s24, s24, 3")
        E("s_lshl_b32 s24, s24, 3")
        E(f"s_add_u32 s24, s24, {j}")
        E("s_lshl_b32 s25, s24, 7")
        E("s_lshl_b32 s24, s24, 16")
        gb.dma(stage % NS, grp)

    for st in range(NS - 1):
        big_issue(st)
    for k in range(32):
        vm = (min(k + NS - 2, 31) - k) * L
        E(f"s_waitcnt vmcnt({vm})")
        E("s_barrier")
        if k + NS - 1 < 32:
            big_issue(k + NS - 1)
    E("s_endpgm")

    def small_srds():
        s1_small_tile("s50")
        E("s_lshr_b32 s42, s3, 1")
        E("s_cmp_eq_u32 s42, 1")
        E("s_cselect_b32 s60, s58, s56")
        E("s_cselect_b32 s61, s59, s57")
        E("s_and_b32 s42, s3, 1")
        E(f"s_mul_i32 s42, s42, {32*LDW}")
        E("s_lshl_b32 s43, s40, 7")
        E("s_add_u32 s42, s42, s43")
        add64(38, "s60", "s61", "s42")
        E(f"s_sub_u32 s43, {D_*LDW}, s42")
        srd(8, "s38", "s39", "s43")
        E("s_lshl_b32 s42, s41, 7")
        E("s_lshl_b32 s43, s3, 5")
        E("s_add_u32 s42, s42, s43")
        E("s_lshl_b32 s42, s42, 10")
        E(f"s_add_u32 s43, s42, {XN_OFF}")
        add64(38, "s4", "s5", "s43")
        E(f"s_sub_u32 s43, {XN_SZ}, s42")
        srd(12, "s38", "s39", "s43")
        E("s_mov_b32 s24, 0")
        E("s_mov_b32 s25, 0")

    def small_issue(slot):
        gs.dma(slot, grp)
        E(f"s_add_u32 s24, s24, {64*LDW}")
        E("s_add_u32 s25, s25, 128")

    E("L_s1l_small:")
    E("s_mov_b32 s50, 0")
    small_srds()
    dma_setup_nt(1024)
    dma_setup_tr128(LDW)
    for st in range(NS - 1):
        small_issue(st)
    E("s_lshl_b32 s26, s48, 1")
    E("s_sub_u32 s26, s26, 1")
    E("L_s1l_small_loop:")
    for s in range(NS):
        E(f"s_waitcnt vmcnt({(NS-2)*L})")
        E("s_barrier")
        if s == 1:
            E("s_cmp_lt_u32 s25, 1024")
            E("s_cbranch_scc1 L_s1l_same")
            E("s_add_u32 s50, s50, 1")
            small_srds()
            E("L_s1l_same:")
        small_issue((s + NS - 1) % NS)
    E("s_sub_u32 s26, s26, 1")
    E("s_cmp_lg_u32 s26, 0")
    E("s_cbranch_scc1 L_s1l_small_loop")
    E(f"s_waitcnt vmcnt({2*L})")
    E("s_barrier")
    small_issue(3)
    E(f"s_waitcnt vmcnt({2*L})")
    E("s_barrier")
    E(f"s_waitcnt vmcnt({L})")
    E("s_barrier")
    E("s_waitcnt vmcnt(0)")
    E("s_barrier")
    E("L_s1_done:")
    E("s_endpgm")


NST2 = 256


def gen_stage2():
    E(".p2align 8")
    E(".globl stage2_kernel")
    E(".type stage2_kernel,@function")
    E("stage2_kernel:")
    E(f"s_cmp_ge_u32 s2, {NST2}")
    E("s_cbranch_scc1 L_s2_done")
    E("s_load_dwordx2 s[4:5], s[0:1], 88")
    E("s_load_dwordx2 s[6:7], s[0:1], 0")
    E("s_load_dwordx2 s[32:33], s[0:1], 72")
    wave_ids()
    E("s_and_b32 s40, s2, 7")
    E("s_lshr_b32 s41, s2, 6")
    E("s_lshl_b32 s41, s41, 3")
    E("s_add_u32 s40, s40, s41")
    E("s_lshr_b32 s41, s2, 3")
    E("s_and_b32 s41, s41, 7")
    E("s_waitcnt lgkmcnt(0)")
    g = Gemm(1, 1, 2, "nt")
    NSTEP = KZ // 128
    PD = 3
    E("s_cmp_ge_u32 s3, 4")
    E("s_cbranch_scc1 L_s2_loader")
    E("s_lshr_b32 s34, s3, 1")
    E("s_and_b32 s35, s3, 1")
    E("s_lshl_b32 s36, s34, 5")
    E("s_lshl_b32 s37, s35, 5")
    srd(20, "s6", "s7", XN_SZ)
    srd(16, "s32", "s33", XN_SZ)
    E("s_lshl_b32 s45, s40, 6")
    E("s_add_u32 s45, s45, s37")
    E("s_lshl_b32 s45, s45, 10")
    E("s_lshl_b32 s44, s41, 6")
    E("s_add_u32 s44, s44, s36")
    E("s_lshl_b32 s44, s44, 1")
    E("s_add_u32 s45, s45, s44")
    E("s_add_u32 s46, s45, 16384")
    E("v_lshrrev_b32 v2, 2, v1")
    E("v_lshlrev_b32 v2, 10, v2")
    E("v_and_b32 v3, 3, v1")
    E("v_lshlrev_b32 v3, 4, v3")
    E("v_add_u32 v9, v2, v3")
    E(f"buffer_load_dwordx4 v[{ET}:{ET+3}], v9, s[20:23], s45 offen")
    E(f"buffer_load_dwordx4 v[{ET+4}:{ET+7}], v9, s[20:23], s46 offen")
    frag_setup_nt(VA, "s36")
    frag_setup_nt(VB, "s37")
    E("s_lshl_b32 s49, s3, 13")
    E(f"s_add_u32 s49, s49, {STG_OFF}")
    g.zero_acc()
    E("s_barrier")
    for u in range(PD):
        g.reads(0, u, u)
    for k in range(NSTEP):
        g.cons_step(k % NS, PD, "always" if k < NSTEP - 1 else None)
    E("s_nop 15")
    E("v_and_b32 v2, 31, v1")
    E("v_lshrrev_b32 v3, 1, v2")
    E("v_and_b32 v3, 7, v3")
    E("v_lshrrev_b32 v4, 5, v1")
    E("v_xor_b32 v3, v3, v4")
    E("v_lshlrev_b32 v3, 4, v3")
    E("v_lshlrev_b32 v2, 7, v2")
    E("v_add_u32 v2, v2, v3")
    E("v_add_u32 v2, s49, v2")
    for gg in range(4):
        E(f"v_xor_b32 v4, {gg<<5}, v2")
        E(f"ds_write_b128 v4, v[{ACC+4*gg}:{ACC+4*gg+3}]")
    E("v_lshrrev_b32 v2, 2, v1")
    E("v_and_b32 v3, 3, v1")
    E("v_lshlrev_b32 v3, 1, v3")
    E("v_lshrrev_b32 v4, 3, v1")
    E("v_xor_b32 v3, v3, v4")
    E("v_lshlrev_b32 v3, 4, v3")
    E("v_lshlrev_b32 v2, 7, v2")
    E("v_add_u32 v2, v2, v3")
    E("v_add_u32 v2, s49, v2")
    E("v_xor_b32 v3, 16, v2")
    E("s_waitcnt lgkmcnt(0)")
    R = ET + 8
    for i in range(2):
        E(f"ds_read_b128 v[{R+8*i}:{R+8*i+3}], v2 offset:{i*2048}")
        E(f"ds_read_b128 v[{R+8*i+4}:{R+8*i+7}], v3 offset:{i*2048}")
    E("s_waitcnt vmcnt(0) lgkmcnt(0)")
    for i in range(2):
        for j in range(4):
            x = ET + 4 * i + j
            E(f"v_lshlrev_b32 v4, 16, v{x}")
            E(f"v_and_b32 v5, 0xffff0000, v{x}")
            E(f"v_add_f32 v4, v4, v{R+8*i+2*j}")
            E(f"v_add_f32 v5, v5, v{R+8*i+2*j+1}")
            E(f"v_cvt_pk_bf16_f32 v{x}, v4, v5")
        E(f"buffer_store_dwordx4 v[{ET+4*i}:{ET+4*i+3}], v9, s[16:19], {'s45' if i == 0 else 's46'} offen")
    rt_end(1)
    E("s_endpgm")
    E("L_s2_loader:")
    E("s_sub_u32 s3, s3, 4")
    E("s_lshr_b32 s34, s3, 1")
    E("s_and_b32 s35, s3, 1")
    E("s_lshl_b32 s28, s3, 13")
    E(f"s_mul_i32 s42, s41, {64*LDZ}")
    E(f"s_add_u32 s42, s42, {V_OFF}")
    E(f"s_sub_u32 s46, {V_OFF + V_SZ}, s42")
    E(f"s_mul_i32 s43, s40, {64*LDZ}")
    E(f"s_add_u32 s43, s43, {Z_OFF}")
    E(f"s_sub_u32 s47, {Z_OFF + Z_SZ}, s43")
    E("s_cmp_eq_u32 s34, 1")
    E("s_cselect_b32 s42, s43, s42")
    E("s_cselect_b32 s46, s47, s46")
    add64(38, "s4", "s5", "s42")
    srd(8, "s38", "s39", "s46")
    E("s_lshl_b32 s24, s35, 7")
    E(f"s_add_u32 s25, s24, {32*LDZ}")
    dma_setup_nt(LDZ)
    grp = [("s[8:11]", "s24", "s28", 0, VOFF), ("s[8:11]", "s25", "s28", 4096, VOFF)]
    L = 8

    def issue(stage):
        g.dma(stage % NS, grp)
        E("s_add_u32 s24, s24, 256")
        E("s_add_u32 s25, s25, 256")

    for st in range(NS - 1):
        issue(st)
    for k in range(NSTEP):
        vm = (min(k + NS - 2, NSTEP - 1) - k) * L
        E(f"s_waitcnt vmcnt({vm})")
        E("s_barrier")
        if k + NS - 1 < NSTEP:
            issue(k + NS - 1)
    E("L_s2_done:")
    E("s_endpgm")


def desc(name, vgpr, sgpr):
    E(".p2align 6")
    E(f".amdhsa_kernel {name}")
    E(f"  .amdhsa_next_free_vgpr {vgpr}")
    E(f"  .amdhsa_next_free_sgpr {sgpr}")
    E(f"  .amdhsa_accum_offset {(vgpr+3)//4*4}")
    E("  .amdhsa_group_segment_fixed_size 0")
    E("  .amdhsa_kernarg_size 96")
    E("  .amdhsa_user_sgpr_count 2")
    E("  .amdhsa_user_sgpr_kernarg_segment_ptr 1")
    E("  .amdhsa_system_sgpr_workgroup_id_x 1")
    E("  .amdhsa_float_denorm_mode_32 3")
    E(".end_amdhsa_kernel")


def main():
    hdr = open(f"cdna_kernels/{NAME}.s.ref").read().split("\n")
    for line in hdr:
        if line.startswith(";") and "@launch" not in line and "Override launch" not in line and "grid=ceil" not in line:
            E(line)
        elif not line.startswith(";"):
            break
    E(f"; @launch kernel=prep_kernel grid=({NPREP},1,1) block=(256,1,1) lds=16384")
    E(f"; @launch kernel=stage1_kernel grid=({NST1},1,1) block=(512,1,1) lds={NS*STAGE+32768}")
    E(f"; @launch kernel=stage2_kernel grid=({NST2},1,1) block=(512,1,1) lds={NS*STAGE+32768}")
    E('.amdgcn_target "amdgcn-amd-amdhsa--gfx950"')
    E(".text")
    gen_prep()
    gen_stage1()
    gen_stage2()
    E('.section .rodata,"a"')
    desc("prep_kernel", 80, 100)
    desc("stage1_kernel", 200, 100)
    desc("stage2_kernel", 200, 100)
    open(os.environ.get("OUT", f"cdna_kernels/{NAME}.s"), "w").write("\n".join(out) + "\n")


if __name__ == "__main__":
    main()
```

```python
import struct, os

EXP = os.environ.get("EXP", "")
NAME = "parallel_sum__spectral_fnet__geglu_ffn__prompt"
S_, D_, F_ = 2048, 512, 1376
FP = 1408
KZ = 2432
LDZ = KZ * 2
LDW = F_ * 2
XN_OFF = 0x000000
V_OFF = 0x200000
Z_OFF = 0x500000
XN_SZ = S_ * D_ * 2
V_SZ = D_ * LDZ
Z_SZ = S_ * LDZ

out = []


def E(s=""):
    out.append(s)


def f32(x):
    return "0x%08x" % struct.unpack("<I", struct.pack("<f", x))[0]


def srd(reg, lo, hi, size):
    E(f"s_mov_b32 s{reg}, {lo}")
    E(f"s_and_b32 s{reg+1}, {hi}, 0xffff")
    E(f"s_mov_b32 s{reg+2}, {size}")
    E(f"s_mov_b32 s{reg+3}, 0x00020000")


def add64(dlo, slo, shi, off):
    E(f"s_add_u32 s{dlo}, {slo}, {off}")
    E(f"s_addc_u32 s{dlo+1}, {shi}, 0")


NRT = [0]


def rt_begin():
    if "rt" not in EXP:
        return
    E("s_memrealtime s[92:93]")
    E("s_memtime s[96:97]")


def rt_end(slot):
    if "rt" not in EXP:
        return
    lab = f"L_rt{NRT[0]}"
    NRT[0] += 1
    E("s_waitcnt vmcnt(0) lgkmcnt(0)")
    E("s_memrealtime s[94:95]")
    E("s_memtime s[98:99]")
    E("s_cmp_lg_u32 s3, 0")
    E(f"s_cbranch_scc1 {lab}")
    E("s_load_dwordx2 s[60:61], s[0:1], 88")
    E("s_waitcnt lgkmcnt(0)")
    E(f"s_add_u32 s64, s60, {0x1E00000 + slot*0x10000}")
    E("s_addc_u32 s65, s61, 0")
    E("s_and_b32 s65, s65, 0xffff")
    E("s_mov_b32 s66, 0x10000")
    E("s_mov_b32 s67, 0x00020000")
    E("s_lshl_b32 s62, s2, 4")
    E("v_mov_b32 v2, s62")
    E("v_mov_b32 v4, s92")
    E("v_mov_b32 v5, s94")
    E("s_sub_u32 s62, s98, s96")
    E("v_mov_b32 v6, s62")
    E("v_mov_b32 v7, 0")
    E("buffer_store_dwordx4 v[4:7], v2, s[64:67], 0 offen")
    E(f"{lab}:")


def wave_ids():
    rt_begin()
    E("v_and_b32 v1, 63, v0")
    E("v_lshrrev_b32 v2, 6, v0")
    E("s_nop 0")
    E("v_readfirstlane_b32 s3, v2")
    E("s_nop 3")


N_LN = 256
N_TR = 0
N_CP = 0
N_PF = 82
NPREP = N_LN + N_TR + N_CP + N_PF


def gen_prep():
    E(".p2align 8")
    E(".globl prep_kernel")
    E(".type prep_kernel,@function")
    E("prep_kernel:")
    E(f"s_cmp_ge_u32 s2, {NPREP}")
    E("s_cbranch_scc1 L_prep_done")
    E("s_load_dwordx2 s[4:5], s[0:1], 88")
    wave_ids()
    E(f"s_cmp_lt_u32 s2, {N_LN}")
    E("s_cbranch_scc1 L_prep_ln")
    E(f"s_cmp_lt_u32 s2, {N_LN + N_TR}")
    E("s_cbranch_scc1 L_prep_tr")
    E(f"s_cmp_lt_u32 s2, {N_LN + N_TR + N_CP}")
    E("s_cbranch_scc1 L_prep_copy")
    E(f"s_sub_u32 s20, s2, {N_LN + N_TR + N_CP}")
    E("s_movk_i32 s21, 48")
    E("s_mov_b32 s22, 0")
    E(f"s_mov_b32 s23, {D_*LDW}")
    for lim, off, sz in ((22, 56, D_ * LDW), (44, 64, F_ * D_ * 2), (66, 24, D_ * D_ * 2), (74, 32, D_ * D_ * 2)):
        E(f"s_cmp_ge_u32 s20, {lim}")
        E(f"s_cselect_b32 s21, {off}, s21")
        E(f"s_cselect_b32 s22, {lim}, s22")
        E(f"s_cselect_b32 s23, {sz}, s23")
    E("s_load_dwordx2 s[6:7], s[0:1], s21")
    E("s_sub_u32 s20, s20, s22")
    E("s_waitcnt lgkmcnt(0)")
    srd(8, "s6", "s7", "s23")
    E("s_lshl_b32 s22, s20, 16")
    E("s_lshl_b32 s23, s3, 14")
    E("s_add_u32 s22, s22, s23")
    E("v_lshlrev_b32 v3, 4, v1")
    for i in range(16):
        E(f"buffer_load_dwordx4 v[{16+4*i}:{16+4*i+3}], v3, s[8:11], s22 offen offset:{(i%4)*1024}")
        if i % 4 == 3:
            E("s_add_u32 s22, s22, 4096")
    E("s_endpgm")

    NR = 2
    E("L_prep_ln:")
    E("s_load_dwordx2 s[6:7], s[0:1], 0")
    E("s_waitcnt lgkmcnt(0)")
    srd(8, "s6", "s7", XN_SZ)
    add64(24, "s4", "s5", XN_OFF)
    srd(12, "s24", "s25", XN_SZ)
    E("s_lshl_b32 s20, s2, 13")
    E("s_lshl_b32 s22, s3, 11")
    E("s_add_u32 s20, s20, s22")
    E("v_lshlrev_b32 v3, 4, v1")
    P0, X0, R0, M0r, T0, U0, W0 = 16, 32, 48, 52, 56, 60, 64
    for i in range(NR):
        E(f"buffer_load_dwordx4 v[{P0+4*i}:{P0+4*i+3}], v3, s[8:11], s20 offen offset:{i*1024}")
    for i in range(NR):
        E(f"s_waitcnt vmcnt({NR-1-i})")
        for j in range(4):
            E(f"v_lshlrev_b32 v{X0+8*i+2*j}, 16, v{P0+4*i+j}")
            E(f"v_and_b32 v{X0+8*i+2*j+1}, 0xffff0000, v{P0+4*i+j}")

    def wave_reduce(base):
        for ctl in ["row_shr:1 row_mask:0xf bank_mask:0xf bound_ctrl:0",
                    "row_shr:2 row_mask:0xf bank_mask:0xf bound_ctrl:0",
                    "row_shr:4 row_mask:0xf bank_mask:0xf bound_ctrl:0",
                    "row_shr:8 row_mask:0xf bank_mask:0xf bound_ctrl:0",
                    "row_bcast:15 row_mask:0xa bank_mask:0xf",
                    "row_bcast:31 row_mask:0xc bank_mask:0xf"]:
            E("s_nop 0")
            for i in range(NR):
                E(f"v_add_f32_dpp v{base+i}, v{base+i}, v{base+i} {ctl}")
        E("s_nop 0")
        for i in range(NR):
            E(f"v_readlane_b32 s{32+i}, v{base+i}, 63")
        E("s_nop 1")

    for i in range(NR):
        E(f"v_add_f32 v{R0+i}, v{X0+8*i}, v{X0+8*i+1}")
    for j in range(2, 8):
        for i in range(NR):
            E(f"v_add_f32 v{R0+i}, v{R0+i}, v{X0+8*i+j}")
    wave_reduce(R0)
    for i in range(NR):
        E(f"v_mov_b32 v{M0r+i}, s{32+i}")
    for i in range(NR):
        E(f"v_mul_f32 v{M0r+i}, {f32(1.0/512)}, v{M0r+i}")
    for j in range(8):
        for i in range(NR):
            E(f"v_sub_f32 v{T0+i}, v{X0+8*i+j}, v{M0r+i}")
        for i in range(NR):
            if j == 0:
                E(f"v_mul_f32 v{R0+i}, v{T0+i}, v{T0+i}")
            else:
                E(f"v_fmac_f32 v{R0+i}, v{T0+i}, v{T0+i}")
    wave_reduce(R0)
    for i in range(NR):
        E(f"v_mov_b32 v{T0+i}, s{32+i}")
    for i in range(NR):
        E(f"v_mul_f32 v{T0+i}, {f32(1.0/512)}, v{T0+i}")
    for i in range(NR):
        E(f"v_cvt_pk_bf16_f32 v{U0+i}, v{T0+i}, v{M0r+i}")
    for i in range(NR):
        E(f"v_lshlrev_b32 v{T0+i}, 16, v{U0+i}")
        E(f"v_and_b32 v{M0r+i}, 0xffff0000, v{U0+i}")
    for i in range(NR):
        E(f"v_add_f32 v{T0+i}, {f32(1e-5)}, v{T0+i}")
    for i in range(NR):
        E(f"v_cvt_pk_bf16_f32 v{U0+i}, v{T0+i}, v{T0+i}")
    for i in range(NR):
        E(f"v_lshlrev_b32 v{T0+i}, 16, v{U0+i}")
    for i in range(NR):
        E(f"v_sqrt_f32 v{T0+i}, v{T0+i}")
    E("s_nop 0")
    for i in range(NR):
        E(f"v_cvt_pk_bf16_f32 v{U0+i}, v{T0+i}, v{T0+i}")
    for i in range(NR):
        E(f"v_lshlrev_b32 v{T0+i}, 16, v{U0+i}")
    for i in range(NR):
        E(f"v_rcp_f32 v{W0+i}, v{T0+i}")
    E("s_nop 0")
    for i in range(NR):
        for j in range(0, 8, 2):
            a_, b_ = X0 + 8 * i + j, X0 + 8 * i + j + 1
            E(f"v_sub_f32 v{a_}, v{a_}, v{M0r+i}")
            E(f"v_sub_f32 v{b_}, v{b_}, v{M0r+i}")
            E(f"v_cvt_pk_bf16_f32 v4, v{a_}, v{b_}")
            E(f"v_lshlrev_b32 v{a_}, 16, v4")
            E(f"v_and_b32 v{b_}, 0xffff0000, v4")
            E(f"v_mul_f32 v5, v{a_}, v{W0+i}")
            E(f"v_mul_f32 v6, v{b_}, v{W0+i}")
            E(f"v_fma_f32 v7, -v5, v{T0+i}, v{a_}")
            E(f"v_fma_f32 v8, -v6, v{T0+i}, v{b_}")
            E(f"v_fma_f32 v5, v7, v{W0+i}, v5")
            E(f"v_fma_f32 v6, v8, v{W0+i}, v6")
            E(f"v_cvt_pk_bf16_f32 v{P0+4*i+j//2}, v5, v6")
    for i in range(NR):
        E(f"buffer_store_dwordx4 v[{P0+4*i}:{P0+4*i+3}], v3, s[12:15], s20 offen offset:{i*1024}")
    E("s_endpgm")

    E("L_prep_tr:")
    if "nov" in EXP:
        E("s_endpgm")
    E("s_load_dwordx2 s[28:29], s[0:1], 64")
    E(f"s_sub_u32 s20, s2, {N_LN}")
    E("s_waitcnt lgkmcnt(0)")
    E("s_lshr_b32 s22, s20, 2")
    E("s_and_b32 s23, s20, 3")
    srd(8, "s28", "s29", F_ * D_ * 2)
    add64(24, "s4", "s5", V_OFF)
    srd(12, "s24", "s25", V_SZ)
    E("v_lshrrev_b32 v3, 4, v1")
    E("v_and_b32 v4, 15, v1")
    E("v_lshlrev_b32 v5, 10, v3")
    E("v_lshlrev_b32 v6, 4, v4")
    E("v_add_u32 v5, v5, v6")
    E("s_lshl_b32 s24, s22, 6")
    E("s_lshl_b32 s25, s3, 4")
    E("s_add_u32 s24, s24, s25")
    E("s_lshl_b32 s24, s24, 10")
    E("s_lshl_b32 s25, s23, 8")
    E("s_add_u32 s24, s24, s25")
    E("v_and_b32 v8, 127, v0")
    E("s_lshl_b32 s31, s23, 7")
    E("v_add_u32 v8, s31, v8")
    E(f"s_movk_i32 s25, {LDZ}")
    E("v_mul_lo_u32 v8, v8, s25")
    E("s_lshl_b32 s31, s22, 7")
    E("s_add_u32 s31, s31, 2048")
    for i in range(4):
        E(f"buffer_load_dwordx4 v[{16+4*i}:{16+4*i+3}], v5, s[8:11], s24 offen")
        E("s_add_u32 s24, s24, 4096")
    E("v_lshlrev_b32 v9, 12, v2")
    E("v_lshlrev_b32 v10, 4, v1")
    E("v_add_u32 v9, v9, v10")
    E("v_lshrrev_b32 v10, 7, v0")
    E("v_lshlrev_b32 v11, 6, v10")
    E("v_add_u32 v8, v8, v11")
    E("v_lshlrev_b32 v10, 13, v10")
    E("v_and_b32 v11, 127, v0")
    E("v_lshlrev_b32 v11, 1, v11")
    E("v_add_u32 v10, v10, v11")
    for i in range(4):
        E(f"s_waitcnt vmcnt({3-i})")
        E(f"ds_write_b128 v9, v[{16+4*i}:{16+4*i+3}] offset:{i*1024}")
    E("s_waitcnt lgkmcnt(0)")
    E("s_barrier")
    for j in range(32):
        E(f"ds_read_u16 v{32+j}, v10 offset:{j*256}")
    for i in range(16):
        if i % 4 == 0:
            E(f"s_waitcnt lgkmcnt({min(15, 24 - 2*i)})")
        E(f"v_lshl_or_b32 v{32+i}, v{32+2*i+1}, 16, v{32+2*i}")
        if i % 4 == 3:
            E(f"buffer_store_dwordx4 v[{32+i-3}:{32+i}], v8, s[12:15], s31 offen offset:{(i//4)*16}")
    E("s_endpgm")

    E("L_prep_copy:")
    if "nov" in EXP:
        E("s_endpgm")
    E("s_load_dwordx2 s[6:7], s[0:1], 24")
    E("s_load_dwordx2 s[26:27], s[0:1], 32")
    E(f"s_sub_u32 s20, s2, {N_LN + N_TR}")
    E("s_lshr_b32 s21, s20, 3")
    E("s_and_b32 s20, s20, 7")
    E("s_waitcnt lgkmcnt(0)")
    E("s_cmp_eq_u32 s21, 1")
    E("s_cselect_b32 s6, s26, s6")
    E("s_cselect_b32 s7, s27, s7")
    E("s_cselect_b32 s28, 0x80008000, 0")
    srd(8, "s6", "s7", D_ * D_ * 2)
    add64(24, "s4", "s5", V_OFF)
    srd(12, "s24", "s25", V_SZ)
    E("s_lshl_b32 s22, s20, 6")
    E("s_add_u32 s22, s22, s3")
    E("s_lshl_b32 s23, s22, 10")
    E(f"s_mul_i32 s24, s22, {LDZ}")
    E("s_lshl_b32 s25, s21, 10")
    E("s_add_u32 s24, s24, s25")
    E("v_lshlrev_b32 v3, 4, v1")
    for i in range(16):
        E(f"buffer_load_dwordx4 v[{16+4*i}:{16+4*i+3}], v3, s[8:11], s23 offen")
        E("s_add_u32 s23, s23, 4096")
    for i in range(16):
        E("s_waitcnt vmcnt(15)")
        for j in range(4):
            E(f"v_xor_b32 v{16+4*i+j}, s28, v{16+4*i+j}")
        E(f"buffer_store_dwordx4 v[{16+4*i}:{16+4*i+3}], v3, s[12:15], s24 offen")
        E(f"s_add_u32 s24, s24, {4*LDZ}")
    E("L_prep_done:")
    E("s_endpgm")


STAGE = 32768
NS = 4
STG_OFF = NS * STAGE
VOFF = 10
VOFA = 16
VA = 16
VB = 24
VF = 32
ACC = 96
ET = 160


def dma_setup_nt(ld):
    E("v_lshrrev_b32 v2, 3, v1")
    E("v_lshrrev_b32 v3, 4, v1")
    E("v_and_b32 v4, 7, v1")
    E(f"s_movk_i32 s29, {ld}")
    for i in range(4):
        E(f"v_add_u32 v5, {8*i}, v2")
        E("v_mul_lo_u32 v5, v5, s29")
        E(f"v_add_u32 v6, {4*i}, v3")
        E("v_and_b32 v6, 7, v6")
        E("v_xor_b32 v6, v6, v4")
        E("v_lshlrev_b32 v6, 4, v6")
        E("v_add_u32 v5, v5, v6")
        if i:
            E(f"v_subrev_u32 v5, {i*1024}, v5")
        E(f"v_mov_b32 v{VOFF+i}, v5")


def dma_setup_tr256(ld):
    E("v_lshrrev_b32 v2, 4, v1")
    E("v_and_b32 v3, 15, v1")
    E("v_lshlrev_b32 v4, 2, v2")
    E("v_xor_b32 v3, v3, v4")
    E("v_lshlrev_b32 v3, 4, v3")
    E(f"s_movk_i32 s29, {ld}")
    for i in range(4):
        E(f"v_add_u32 v5, {4*i}, v2")
        E("v_mul_lo_u32 v5, v5, s29")
        E("v_add_u32 v5, v5, v3")
        if i:
            E(f"v_subrev_u32 v5, {i*1024}, v5")
        E(f"v_mov_b32 v{VOFA+i}, v5")


def dma_setup_tr128(ld):
    E("v_lshrrev_b32 v2, 3, v1")
    E("v_and_b32 v3, 7, v1")
    E("v_lshrrev_b32 v4, 4, v1")
    E("v_and_b32 v4, 1, v4")
    E("v_lshlrev_b32 v4, 2, v4")
    E("v_xor_b32 v3, v3, v4")
    E("v_lshlrev_b32 v3, 4, v3")
    E(f"s_movk_i32 s29, {ld}")
    for i in range(4):
        E(f"v_add_u32 v5, {8*i}, v2")
        E("v_mul_lo_u32 v5, v5, s29")
        E("v_add_u32 v5, v5, v3")
        if i:
            E(f"v_subrev_u32 v5, {i*1024}, v5")
        E(f"v_mov_b32 v{VOFA+i}, v5")


def frag_setup_nt(base_reg, wrow):
    E("v_and_b32 v2, 31, v1")
    E("v_lshrrev_b32 v3, 5, v1")
    E("v_lshrrev_b32 v4, 1, v2")
    E("v_and_b32 v4, 7, v4")
    E("v_xor_b32 v4, v4, v3")
    E("v_lshlrev_b32 v4, 4, v4")
    E("v_lshlrev_b32 v5, 7, v2")
    E("v_add_u32 v4, v4, v5")
    E(f"s_lshl_b32 s30, {wrow}, 7")
    for j in range(4):
        E(f"v_xor_b32 v5, {j*32}, v4")
        E(f"v_add_u32 v{base_reg+j}, s30, v5")
        E(f"v_add_u32 v{base_reg+4+j}, 0x10000, v{base_reg+j}")


def frag_setup_tr256(wm):
    E("v_and_b32 v2, 15, v1")
    E("v_lshrrev_b32 v2, 2, v2")
    E("v_lshrrev_b32 v3, 5, v1")
    E("v_lshlrev_b32 v3, 3, v3")
    E("v_add_u32 v3, v3, v2")
    E("v_lshlrev_b32 v3, 8, v3")
    E("v_lshrrev_b32 v4, 4, v1")
    E("v_and_b32 v4, 1, v4")
    E("v_lshlrev_b32 v4, 1, v4")
    E("v_and_b32 v5, 3, v1")
    E("v_lshrrev_b32 v5, 1, v5")
    E("v_add_u32 v4, v4, v5")
    E(f"s_lshl_b32 s30, {wm}, 3")
    E("v_add_u32 v4, s30, v4")
    E("v_lshlrev_b32 v5, 2, v2")
    E("v_xor_b32 v4, v4, v5")
    E("v_lshlrev_b32 v4, 4, v4")
    E("v_add_u32 v3, v3, v4")
    E("v_and_b32 v4, 1, v1")
    E("v_lshlrev_b32 v4, 3, v4")
    E(f"v_add_u32 v{VA}, v3, v4")
    E(f"v_xor_b32 v{VA+1}, 64, v{VA}")
    E(f"v_add_u32 v{VA+2}, 0x10000, v{VA}")
    E(f"v_add_u32 v{VA+3}, 0x10000, v{VA+1}")


def frag_setup_tr128(wm):
    E("v_and_b32 v2, 15, v1")
    E("v_lshrrev_b32 v2, 2, v2")
    E("v_lshrrev_b32 v3, 5, v1")
    E("v_lshlrev_b32 v3, 3, v3")
    E("v_add_u32 v3, v3, v2")
    E("v_lshlrev_b32 v3, 7, v3")
    E("v_lshrrev_b32 v4, 4, v1")
    E("v_and_b32 v4, 1, v4")
    E("v_lshlrev_b32 v4, 1, v4")
    E("v_and_b32 v5, 3, v1")
    E("v_lshrrev_b32 v5, 1, v5")
    E("v_add_u32 v4, v4, v5")
    E(f"s_lshl_b32 s30, {wm}, 2")
    E("v_add_u32 v4, s30, v4")
    E("v_lshrrev_b32 v5, 3, v1")
    E("v_and_b32 v5, 1, v5")
    E("v_lshlrev_b32 v5, 2, v5")
    E("v_xor_b32 v4, v4, v5")
    E("v_lshlrev_b32 v4, 4, v4")
    E("v_add_u32 v3, v3, v4")
    E("v_and_b32 v4, 1, v1")
    E("v_lshlrev_b32 v4, 3, v4")
    E(f"v_add_u32 v{VA}, v3, v4")
    E(f"v_add_u32 v{VA+1}, 0x10000, v{VA}")


class Gemm:
    def __init__(self, BM, BN, KP, amode):
        self.BM, self.BN, self.KP, self.amode = BM, BN, KP, amode
        self.nsub = 4 * KP
        self.fsz = (BM + BN) * 4
        self.panel = 16384 // KP
        self.nr = BN + (BM if amode == "nt" else 2 * BM)

    def dma(self, slot, groups):
        for (sr, so, mb, mi, vo) in groups:
            E(f"s_add_u32 m0, {mb}, {slot*STAGE + mi}")
            E("s_nop 0")
            for i in range(4):
                E(f"buffer_load_dwordx4 v{vo+i}, {sr}, {so} offen offset:{i*1024} lds")

    def reads(self, slot, sub, st):
        p, j = sub // 4, sub % 4
        half = slot // 2
        base = (slot % 2) * STAGE
        for bm in range(self.BM):
            r = VF + st * self.fsz + bm * 4
            if self.amode == "nt":
                E(f"ds_read_b128 v[{r}:{r+3}], v{VA+half*4+j} offset:{base + p*self.panel + bm*4096}")
            elif self.amode == "tr256":
                for q in range(2):
                    E(f"ds_read_b64_tr_b16 v[{r+2*q}:{r+2*q+1}], v{VA+half*2+bm} offset:{base + j*4096 + q*1024}")
            else:
                for q in range(2):
                    E(f"ds_read_b64_tr_b16 v[{r+2*q}:{r+2*q+1}], v{VA+half} offset:{base + bm*8192 + j*2048 + q*512}")
        for bn in range(self.BN):
            r = VF + st * self.fsz + self.BM * 4 + bn * 4
            E(f"ds_read_b128 v[{r}:{r+3}], v{VB+half*4+j} offset:{base + 16384 + p*self.panel + bn*4096}")

    def mfmas(self, st):
        for bm in range(self.BM):
            for bn in range(self.BN):
                a = VF + st * self.fsz + bm * 4
                b = VF + st * self.fsz + self.BM * 4 + bn * 4
                c = ACC + (bm * self.BN + bn) * 16
                E(f"v_mfma_f32_32x32x16_bf16 v[{c}:{c+15}], v[{a}:{a+3}], v[{b}:{b+3}], v[{c}:{c+15}]")

    def zero_acc(self):
        for r in range(ACC, ACC + self.BM * self.BN * 16):
            E(f"v_mov_b32 v{r}, 0")

    def cons_step(self, slot, PD, nxt):
        n = self.nsub
        nslot = (slot + 1) % NS
        for u in range(n):
            st = u % 4
            t = u + PD
            if t < n:
                self.reads(slot, t, t % 4)
                E(f"s_waitcnt lgkmcnt({PD*self.nr})")
            else:
                if t == n:
                    E("s_waitcnt lgkmcnt(0)")
                    if nxt == "always":
                        E("s_barrier")
                    elif nxt is not None:
                        E("s_cmp_eq_u32 s27, 0")
                        E(f"s_cbranch_scc1 {nxt}_a")
                        E("s_barrier")
                if nxt is not None:
                    self.reads(nslot, t - n, t % 4)
                    if nxt != "always":
                        E(f"{nxt}_{'a' if t == n else 'b%d' % t}:")
            self.mfmas(st)
            if t >= n and t + 1 < n + PD and nxt not in (None, "always"):
                E("s_cmp_eq_u32 s27, 0")
                E(f"s_cbranch_scc1 {nxt}_b{t+1}")


NBIG = 128
NST1 = 256


def s1_big_tile():
    E("s_and_b32 s40, s2, 7")
    E("s_lshr_b32 s41, s2, 5")
    E("s_lshl_b32 s41, s41, 3")
    E("s_add_u32 s40, s40, s41")
    E("s_lshr_b32 s41, s2, 3")
    E("s_and_b32 s41, s41, 3")


def s1_small_tile(ti):
    E(f"s_sub_u32 s42, s2, {NBIG}")
    E("s_and_b32 s43, s42, 7")
    E("s_lshr_b32 s42, s42, 3")
    E(f"s_lshl_b32 s44, {ti}, 4")
    E("s_add_u32 s42, s42, s44")
    E("s_lshr_b32 s40, s42, 1")
    E("s_and_b32 s42, s42, 1")
    E("s_lshl_b32 s41, s43, 1")
    E("s_add_u32 s41, s41, s42")


def korder():
    if "korder0" in EXP:
        return [(dq, j) for dq in range(4) for j in range(8)]
    seq = [(0, 0), (0, 1)]
    for j in range(6):
        seq += [(1, j), (0, j + 2)]
    seq += [(1, 6), (1, 7)]
    seq += [(dq, j) for dq in (2, 3) for j in range(8)]
    return seq


def gen_vbuild():
    E("L_s1_vbuild:")
    E("s_load_dwordx2 s[6:7], s[0:1], 24")
    E("s_load_dwordx2 s[26:27], s[0:1], 32")
    E("s_load_dwordx2 s[28:29], s[0:1], 64")
    E(f"s_sub_u32 s42, s2, {NBIG}")
    E("s_and_b32 s43, s42, 7")
    E("s_lshr_b32 s42, s42, 3")
    E("s_sub_u32 s42, s42, 12")
    E("s_lshl_b32 s42, s42, 3")
    E("s_add_u32 s42, s42, s43")
    E("s_lshr_b32 s43, s3, 2")
    E("s_lshl_b32 s51, s42, 1")
    E("s_add_u32 s51, s51, s43")
    E("s_and_b32 s52, s3, 3")
    E("s_lshl_b32 s53, s43, 15")
    E("v_and_b32 v20, 255, v0")
    add64(24, "s4", "s5", V_OFF)
    srd(12, "s24", "s25", V_SZ)
    E("s_waitcnt vmcnt(0) lgkmcnt(0)")
    srd(8, "s28", "s29", F_ * D_ * 2)
    E("s_barrier")
    E("v_lshrrev_b32 v3, 4, v1")
    E("v_and_b32 v4, 15, v1")
    E("v_lshlrev_b32 v5, 10, v3")
    E("v_lshlrev_b32 v6, 4, v4")
    E("v_add_u32 v5, v5, v6")

    def tr_loads(unit, base):
        E(f"s_lshr_b32 s22, {unit}, 2")
        E(f"s_and_b32 s23, {unit}, 3")
        E("s_lshl_b32 s24, s22, 6")
        E("s_lshl_b32 s25, s52, 4")
        E("s_add_u32 s24, s24, s25")
        E("s_lshl_b32 s24, s24, 10")
        E("s_lshl_b32 s25, s23, 8")
        E("s_add_u32 s24, s24, s25")
        for i in range(4):
            E(f"buffer_load_dwordx4 v[{base+4*i}:{base+4*i+3}], v5, s[8:11], s24 offen")
            E("s_add_u32 s24, s24, 4096")

    tr_loads("s51", 32)
    E("s_add_u32 s54, s51, 64")
    tr_loads("s54", 48)
    E("s_cmp_lt_u32 s51, 48")
    E("s_cbranch_scc1 L_vb_nocopy")
    E("s_sub_u32 s22, s51, 48")
    E("s_lshr_b32 s21, s22, 3")
    E("s_and_b32 s20, s22, 7")
    E("s_cmp_eq_u32 s21, 1")
    E("s_cselect_b32 s30, s26, s6")
    E("s_cselect_b32 s31, s27, s7")
    E("s_cselect_b32 s44, 0x80008000, 0")
    srd(16, "s30", "s31", D_ * D_ * 2)
    E("s_lshl_b32 s22, s20, 6")
    E("s_add_u32 s22, s22, s52")
    E("s_lshl_b32 s23, s22, 10")
    E(f"s_mul_i32 s24, s22, {LDZ}")
    E("s_lshl_b32 s25, s21, 10")
    E("s_add_u32 s24, s24, s25")
    E("v_lshlrev_b32 v3, 4, v1")
    for i in range(16):
        E(f"buffer_load_dwordx4 v[{64+4*i}:{64+4*i+3}], v3, s[16:19], s23 offen")
        E("s_add_u32 s23, s23, 4096")
    for i in range(16):
        E("s_waitcnt vmcnt(15)")
        for j in range(4):
            E(f"v_xor_b32 v{64+4*i+j}, s44, v{64+4*i+j}")
        E(f"buffer_store_dwordx4 v[{64+4*i}:{64+4*i+3}], v3, s[12:15], s24 offen")
        E(f"s_add_u32 s24, s24, {4*LDZ}")
    E("L_vb_nocopy:")
    E("s_lshl_b32 s25, s52, 12")
    E("s_add_u32 s25, s25, s53")
    E("v_lshlrev_b32 v9, 4, v1")
    E("v_add_u32 v9, s25, v9")
    E("s_waitcnt vmcnt(0)")
    for u in range(2):
        for i in range(4):
            E(f"ds_write_b128 v9, v[{32+16*u+4*i}:{32+16*u+4*i+3}] offset:{u*16384 + i*1024}")
    E("s_waitcnt lgkmcnt(0)")
    E("s_barrier")
    for u in range(2):
        unit = "s51" if u == 0 else "s54"
        if u == 1:
            E("s_cmp_ge_u32 s54, 88")
            E("s_cbranch_scc1 L_vb_end")
        E(f"s_lshr_b32 s22, {unit}, 2")
        E(f"s_and_b32 s23, {unit}, 3")
        E("v_and_b32 v8, 127, v20")
        E("s_lshl_b32 s31, s23, 7")
        E("v_add_u32 v8, s31, v8")
        E(f"s_movk_i32 s25, {LDZ}")
        E("v_mul_lo_u32 v8, v8, s25")
        E("s_lshl_b32 s31, s22, 7")
        E("s_add_u32 s31, s31, 2048")
        E("v_lshrrev_b32 v10, 7, v20")
        E("v_lshlrev_b32 v11, 6, v10")
        E("v_add_u32 v8, v8, v11")
        E("v_lshlrev_b32 v10, 13, v10")
        E("v_and_b32 v11, 127, v20")
        E("v_lshlrev_b32 v11, 1, v11")
        E("v_add_u32 v10, v10, v11")
        E("v_add_u32 v10, s53, v10")
        B = 64 + 32 * u
        for j in range(32):
            E(f"ds_read_u16 v{B+j}, v10 offset:{u*16384 + j*256}")
        for i in range(16):
            if i % 4 == 0:
                E(f"s_waitcnt lgkmcnt({min(15, 24 - 2*i)})")
            E(f"v_lshl_or_b32 v{B+i}, v{B+2*i+1}, 16, v{B+2*i}")
            if i % 4 == 3:
                E(f"buffer_store_dwordx4 v[{B+i-3}:{B+i}], v8, s[12:15], s31 offen offset:{(i//4)*16}")
    E("L_vb_end:")
    E("s_endpgm")


def gen_stage1():
    E(".p2align 8")
    E(".globl stage1_kernel")
    E(".type stage1_kernel,@function")
    E("stage1_kernel:")
    E(f"s_cmp_ge_u32 s2, {NST1}")
    E("s_cbranch_scc1 L_s1_done")
    E("s_load_dwordx2 s[4:5], s[0:1], 88")
    E("s_load_dwordx2 s[6:7], s[0:1], 8")
    E("s_load_dwordx2 s[32:33], s[0:1], 16")
    E("s_load_dwordx2 s[56:57], s[0:1], 48")
    E("s_load_dwordx2 s[58:59], s[0:1], 56")
    wave_ids()
    E(f"s_sub_u32 s48, s2, {NBIG}")
    E("s_lshr_b32 s48, s48, 3")
    E("s_cmp_lt_u32 s48, 12")
    E("s_cselect_b32 s48, 3, 2")
    E("s_waitcnt lgkmcnt(0)")
    E("s_cmp_ge_u32 s3, 4")
    E("s_cbranch_scc1 L_s1_loader")

    gb = Gemm(2, 2, 1, "tr256")
    gs = Gemm(2, 2, 1, "tr128")
    PD = 2
    E("s_lshr_b32 s34, s3, 1")
    E("s_and_b32 s35, s3, 1")
    E("s_lshl_b32 s36, s34, 6")
    E("s_lshl_b32 s37, s35, 6")
    add64(38, "s4", "s5", Z_OFF)
    srd(16, "s38", "s39", Z_SZ)
    frag_setup_nt(VB, "s37")
    E("s_lshl_b32 s49, s3, 13")
    E(f"s_add_u32 s49, s49, {STG_OFF}")
    E(f"s_cmp_ge_u32 s2, {NBIG}")
    E("s_cbranch_scc1 L_s1c_small")

    frag_setup_tr256("s34")
    gb.zero_acc()
    E("s_barrier")
    for u in range(PD):
        gb.reads(0, u, u)
    E("s_mov_b32 s27, 7")
    E("L_s1c_big_loop:")
    for s in range(NS):
        gb.cons_step(s, PD, "always" if s < NS - 1 else "L_s1cb")
    E("s_sub_u32 s27, s27, 1")
    E("s_cmp_ge_i32 s27, 0")
    E("s_cbranch_scc1 L_s1c_big_loop")
    E("s_nop 15")
    s1_big_tile()
    E("s_cmp_ge_u32 s40, 16")
    E("s_cselect_b32 s44, 512, 0")
    E("s_and_b32 s45, s40, 15")
    E("s_lshl_b32 s45, s45, 7")
    E("s_add_u32 s45, s45, s37")
    E(f"s_mul_i32 s45, s45, {LDZ}")
    E("s_lshl_b32 s41, s41, 7")
    E("s_add_u32 s44, s44, s41")
    E("s_add_u32 s44, s44, s36")
    E("s_lshl_b32 s44, s44, 1")
    E("s_add_u32 s45, s45, s44")
    E("v_and_b32 v2, 31, v1")
    E("v_lshrrev_b32 v3, 1, v2")
    E("v_and_b32 v3, 7, v3")
    E("v_lshlrev_b32 v3, 4, v3")
    E("v_lshlrev_b32 v2, 7, v2")
    E("v_add_u32 v2, v2, v3")
    E("v_lshrrev_b32 v3, 5, v1")
    E("v_lshlrev_b32 v3, 3, v3")
    E("v_add_u32 v2, v2, v3")
    E("v_add_u32 v2, s49, v2")
    n = 0
    for bm in range(2):
        for gg in range(4):
            ch = bm * 4 + gg
            E(f"v_xor_b32 v4, {ch<<4}, v2")
            for bn in range(2):
                c = ACC + (bm * 2 + bn) * 16
                t = ET + (n % 8) * 2
                n += 1
                E(f"v_cvt_pk_bf16_f32 v{t}, v{c+4*gg}, v{c+4*gg+1}")
                E(f"v_cvt_pk_bf16_f32 v{t+1}, v{c+4*gg+2}, v{c+4*gg+3}")
                E(f"ds_write_b64 v4, v[{t}:{t+1}] offset:{bn*4096}")
    E("v_lshrrev_b32 v2, 3, v1")
    E("v_and_b32 v3, 7, v1")
    E("v_lshrrev_b32 v4, 4, v1")
    E("v_xor_b32 v4, v4, v3")
    E("v_lshlrev_b32 v4, 4, v4")
    E("v_lshlrev_b32 v5, 7, v2")
    E("v_add_u32 v4, v4, v5")
    E("v_add_u32 v4, s49, v4")
    E("v_xor_b32 v5, 64, v4")
    E(f"s_movk_i32 s29, {LDZ}")
    E("v_mul_lo_u32 v6, v2, s29")
    E("v_lshlrev_b32 v3, 4, v3")
    E("v_add_u32 v6, v6, v3")
    E("s_waitcnt lgkmcnt(0)")
    for i in range(8):
        E(f"ds_read_b128 v[{ET+4*i}:{ET+4*i+3}], v{4 + (i&1)} offset:{i*1024}")
    for i in range(8):
        E(f"s_waitcnt lgkmcnt({7-i})")
        E(f"buffer_store_dwordx4 v[{ET+4*i}:{ET+4*i+3}], v6, s[16:19], s45 offen")
        E(f"s_add_u32 s45, s45, {8*LDZ}")
    rt_end(0)
    E("s_endpgm")

    E("L_s1c_small:")
    frag_setup_tr128("s34")
    CK = -2.0 * 0.7978845608028654 * 1.4426950408889634
    E(f"s_mov_b32 s46, {f32(0.044715*CK)}")
    E(f"s_mov_b32 s47, {f32(0.044715*CK)}")
    E(f"v_mov_b32 v14, {f32(CK)}")
    E(f"v_mov_b32 v15, {f32(CK)}")
    E("s_mov_b32 s54, 1.0")
    E("s_mov_b32 s55, 1.0")
    E("s_mov_b32 s50, 0")
    E("s_lshl_b32 s27, s48, 1")
    E("s_sub_u32 s27, s27, 1")
    E("v_and_b32 v2, 31, v1")
    E("v_lshrrev_b32 v3, 2, v2")
    E("v_and_b32 v3, 3, v3")
    E("v_lshlrev_b32 v3, 4, v3")
    E("v_lshlrev_b32 v2, 6, v2")
    E("v_add_u32 v2, v2, v3")
    E("v_lshrrev_b32 v3, 5, v1")
    E("v_lshlrev_b32 v3, 3, v3")
    E("v_add_u32 v2, v2, v3")
    E("v_add_u32 v7, s49, v2")
    E("v_lshrrev_b32 v2, 2, v1")
    E("v_and_b32 v3, 3, v1")
    E("v_lshrrev_b32 v4, 4, v1")
    E("v_and_b32 v4, 3, v4")
    E("v_xor_b32 v4, v4, v3")
    E("v_lshlrev_b32 v4, 4, v4")
    E("v_lshlrev_b32 v5, 6, v2")
    E("v_add_u32 v4, v4, v5")
    E("v_add_u32 v8, s49, v4")
    E(f"s_movk_i32 s29, {LDZ}")
    E("v_mul_lo_u32 v9, v2, s29")
    E("v_lshlrev_b32 v3, 4, v3")
    E("v_add_u32 v9, v9, v3")
    E("s_barrier")
    for u in range(PD):
        gs.reads(0, u, u)
    E("L_s1c_tile:")
    gs.zero_acc()
    for rep in range(2):
        for s in range(NS):
            gs.cons_step(s, PD, "always" if s < NS - 1 else f"L_s1cs{rep}")
        E("s_sub_u32 s27, s27, 1")
    E("s_nop 15")
    s1_small_tile("s50")
    E("s_lshl_b32 s45, s41, 7")
    E("s_add_u32 s45, s45, s37")
    E(f"s_mul_i32 s45, s45, {LDZ}")
    E("s_lshl_b32 s44, s40, 1")
    E("s_add_u32 s44, s44, s34")
    E("s_lshl_b32 s44, s44, 6")
    E("s_add_u32 s45, s45, s44")
    E("s_add_u32 s45, s45, 2048")
    for bn in range(2):
        cg = ACC + (0 * 2 + bn) * 16
        cu = ACC + (1 * 2 + bn) * 16
        for gp in range(2):
            G = ET + 16 * gp
            for q in range(2):
                gg = gp * 2 + q
                T = G + 4 * q
                for r in range(0, 4, 2):
                    E(f"v_pk_mul_f32 v[{T+r}:{T+r+1}], v[{cg+4*gg+r}:{cg+4*gg+r+1}], v[{cg+4*gg+r}:{cg+4*gg+r+1}]")
            for q in range(2):
                T = G + 4 * q
                for r in range(0, 4, 2):
                    E(f"v_pk_fma_f32 v[{T+r}:{T+r+1}], v[{T+r}:{T+r+1}], s[46:47], v[14:15]")
            for q in range(2):
                gg = gp * 2 + q
                T = G + 4 * q
                for r in range(0, 4, 2):
                    E(f"v_pk_mul_f32 v[{T+r}:{T+r+1}], v[{T+r}:{T+r+1}], v[{cg+4*gg+r}:{cg+4*gg+r+1}]")
            for r in range(8):
                E(f"v_exp_f32 v{G+r}, v{G+r}")
            for r in range(0, 8, 2):
                E(f"v_pk_add_f32 v[{G+r}:{G+r+1}], v[{G+r}:{G+r+1}], s[54:55]")
            for r in range(8):
                E(f"v_rcp_f32 v{G+r}, v{G+r}")
            for q in range(2):
                gg = gp * 2 + q
                T = G + 8 + 4 * q
                for r in range(0, 4, 2):
                    E(f"v_pk_mul_f32 v[{T+r}:{T+r+1}], v[{cg+4*gg+r}:{cg+4*gg+r+1}], v[{cu+4*gg+r}:{cu+4*gg+r+1}]")
            for r in range(0, 8, 2):
                E(f"v_pk_mul_f32 v[{G+r}:{G+r+1}], v[{G+r}:{G+r+1}], v[{G+8+r}:{G+8+r+1}]")
            for q in range(2):
                gg = gp * 2 + q
                t = G + 8 + 2 * q
                E(f"v_cvt_pk_bf16_f32 v{t}, v{G+4*q}, v{G+4*q+1}")
                E(f"v_cvt_pk_bf16_f32 v{t+1}, v{G+4*q+2}, v{G+4*q+3}")
                E(f"v_xor_b32 v{G+12+q}, {gg<<4}, v7")
                E(f"ds_write_b64 v{G+12+q}, v[{t}:{t+1}] offset:{bn*2048}")
    E("s_waitcnt lgkmcnt(0)")
    for i in range(4):
        E(f"ds_read_b128 v[{ET+4*i}:{ET+4*i+3}], v8 offset:{i*1024}")
    for i in range(4):
        E(f"s_waitcnt lgkmcnt({3-i})")
        E(f"buffer_store_dwordx4 v[{ET+4*i}:{ET+4*i+3}], v9, s[16:19], s45 offen")
        E(f"s_add_u32 s45, s45, {16*LDZ}")
    E("s_add_u32 s50, s50, 1")
    E("s_cmp_lt_u32 s50, s48")
    E("s_cbranch_scc1 L_s1c_tile")
    rt_end(0)
    E("s_cmp_eq_u32 s48, 2")
    E("s_cbranch_scc1 L_s1_vbuild")
    E("s_endpgm")

    L = 8
    E("L_s1_loader:")
    E("s_sub_u32 s3, s3, 4")
    E("s_lshl_b32 s28, s3, 12")
    E(f"s_cmp_ge_u32 s2, {NBIG}")
    E("s_cbranch_scc1 L_s1l_small")
    s1_big_tile()
    E("s_lshl_b32 s42, s41, 8")
    E("s_lshl_b32 s43, s3, 14")
    E("s_add_u32 s42, s42, s43")
    E(f"s_add_u32 s43, s42, {XN_OFF}")
    add64(38, "s4", "s5", "s43")
    E(f"s_sub_u32 s43, {XN_SZ}, s42")
    srd(8, "s38", "s39", "s43")
    E("s_cmp_ge_u32 s40, 16")
    E("s_cselect_b32 s6, s32, s6")
    E("s_cselect_b32 s7, s33, s7")
    E("s_and_b32 s45, s40, 15")
    E("s_lshl_b32 s42, s45, 7")
    E("s_lshl_b32 s43, s3, 5")
    E("s_add_u32 s42, s42, s43")
    E("s_lshl_b32 s42, s42, 12")
    add64(38, "s6", "s7", "s42")
    E(f"s_sub_u32 s43, {S_*S_*2}, s42")
    srd(12, "s38", "s39", "s43")
    dma_setup_nt(4096)
    dma_setup_tr256(1024)
    grp = [("s[8:11]", "s24", "s28", 0, VOFA), ("s[12:15]", "s25", "s28", 16384, VOFF)]
    seq = korder()

    def big_issue(stage):
        dq, j = seq[stage]
        E(f"s_add_u32 s24, s41, {dq}")
        E("s_and_b32 s24, s24, 3")
        E("s_lshl_b32 s24, s24, 3")
        E(f"s_add_u32 s24, s24, {j}")
        E("s_lshl_b32 s25, s24, 7")
        E("s_lshl_b32 s24, s24, 16")
        gb.dma(stage % NS, grp)

    for st in range(NS - 1):
        big_issue(st)
    for k in range(32):
        vm = (min(k + NS - 2, 31) - k) * L
        E(f"s_waitcnt vmcnt({vm})")
        E("s_barrier")
        if k + NS - 1 < 32:
            big_issue(k + NS - 1)
    E("s_endpgm")

    def small_srds():
        s1_small_tile("s50")
        E("s_lshr_b32 s42, s3, 1")
        E("s_cmp_eq_u32 s42, 1")
        E("s_cselect_b32 s60, s58, s56")
        E("s_cselect_b32 s61, s59, s57")
        E("s_and_b32 s42, s3, 1")
        E(f"s_mul_i32 s42, s42, {32*LDW}")
        E("s_lshl_b32 s43, s40, 7")
        E("s_add_u32 s42, s42, s43")
        add64(38, "s60", "s61", "s42")
        E(f"s_sub_u32 s43, {D_*LDW}, s42")
        srd(8, "s38", "s39", "s43")
        E("s_lshl_b32 s42, s41, 7")
        E("s_lshl_b32 s43, s3, 5")
        E("s_add_u32 s42, s42, s43")
        E("s_lshl_b32 s42, s42, 10")
        E(f"s_add_u32 s43, s42, {XN_OFF}")
        add64(38, "s4", "s5", "s43")
        E(f"s_sub_u32 s43, {XN_SZ}, s42")
        srd(12, "s38", "s39", "s43")
        E("s_mov_b32 s24, 0")
        E("s_mov_b32 s25, 0")

    def small_issue(slot):
        gs.dma(slot, grp)
        E(f"s_add_u32 s24, s24, {64*LDW}")
        E("s_add_u32 s25, s25, 128")

    E("L_s1l_small:")
    E("s_mov_b32 s50, 0")
    small_srds()
    dma_setup_nt(1024)
    dma_setup_tr128(LDW)
    for st in range(NS - 1):
        small_issue(st)
    E("s_lshl_b32 s26, s48, 1")
    E("s_sub_u32 s26, s26, 1")
    E("L_s1l_small_loop:")
    for s in range(NS):
        E(f"s_waitcnt vmcnt({(NS-2)*L})")
        E("s_barrier")
        if s == 1:
            E("s_cmp_lt_u32 s25, 1024")
            E("s_cbranch_scc1 L_s1l_same")
            E("s_add_u32 s50, s50, 1")
            small_srds()
            E("L_s1l_same:")
        small_issue((s + NS - 1) % NS)
    E("s_sub_u32 s26, s26, 1")
    E("s_cmp_lg_u32 s26, 0")
    E("s_cbranch_scc1 L_s1l_small_loop")
    E(f"s_waitcnt vmcnt({2*L})")
    E("s_barrier")
    small_issue(3)
    E(f"s_waitcnt vmcnt({2*L})")
    E("s_barrier")
    E(f"s_waitcnt vmcnt({L})")
    E("s_barrier")
    E("s_waitcnt vmcnt(0)")
    E("s_barrier")
    E("s_cmp_eq_u32 s48, 2")
    E("s_cbranch_scc0 L_s1_done")
    E("s_add_u32 s3, s3, 4")
    gen_vbuild()
    E("L_s1_done:")
    E("s_endpgm")


NST2 = 256


def gen_stage2():
    E(".p2align 8")
    E(".globl stage2_kernel")
    E(".type stage2_kernel,@function")
    E("stage2_kernel:")
    E(f"s_cmp_ge_u32 s2, {NST2}")
    E("s_cbranch_scc1 L_s2_done")
    E("s_load_dwordx2 s[4:5], s[0:1], 88")
    E("s_load_dwordx2 s[6:7], s[0:1], 0")
    E("s_load_dwordx2 s[32:33], s[0:1], 72")
    wave_ids()
    E("s_and_b32 s40, s2, 7")
    E("s_lshr_b32 s41, s2, 6")
    E("s_lshl_b32 s41, s41, 3")
    E("s_add_u32 s40, s40, s41")
    E("s_lshr_b32 s41, s2, 3")
    E("s_and_b32 s41, s41, 7")
    E("s_waitcnt lgkmcnt(0)")
    g = Gemm(1, 1, 2, "nt")
    NSTEP = KZ // 128
    PD = 3
    E("s_cmp_ge_u32 s3, 4")
    E("s_cbranch_scc1 L_s2_loader")
    E("s_lshr_b32 s34, s3, 1")
    E("s_and_b32 s35, s3, 1")
    E("s_lshl_b32 s36, s34, 5")
    E("s_lshl_b32 s37, s35, 5")
    srd(20, "s6", "s7", XN_SZ)
    srd(16, "s32", "s33", XN_SZ)
    E("s_lshl_b32 s45, s40, 6")
    E("s_add_u32 s45, s45, s37")
    E("s_lshl_b32 s45, s45, 10")
    E("s_lshl_b32 s44, s41, 6")
    E("s_add_u32 s44, s44, s36")
    E("s_lshl_b32 s44, s44, 1")
    E("s_add_u32 s45, s45, s44")
    E("s_add_u32 s46, s45, 16384")
    E("v_lshrrev_b32 v2, 2, v1")
    E("v_lshlrev_b32 v2, 10, v2")
    E("v_and_b32 v3, 3, v1")
    E("v_lshlrev_b32 v3, 4, v3")
    E("v_add_u32 v9, v2, v3")
    E(f"buffer_load_dwordx4 v[{ET}:{ET+3}], v9, s[20:23], s45 offen")
    E(f"buffer_load_dwordx4 v[{ET+4}:{ET+7}], v9, s[20:23], s46 offen")
    frag_setup_nt(VA, "s36")
    frag_setup_nt(VB, "s37")
    E("s_lshl_b32 s49, s3, 13")
    E(f"s_add_u32 s49, s49, {STG_OFF}")
    g.zero_acc()
    E("s_barrier")
    for u in range(PD):
        g.reads(0, u, u)
    for k in range(NSTEP):
        g.cons_step(k % NS, PD, "always" if k < NSTEP - 1 else None)
    E("s_nop 15")
    E("v_and_b32 v2, 31, v1")
    E("v_lshrrev_b32 v3, 1, v2")
    E("v_and_b32 v3, 7, v3")
    E("v_lshrrev_b32 v4, 5, v1")
    E("v_xor_b32 v3, v3, v4")
    E("v_lshlrev_b32 v3, 4, v3")
    E("v_lshlrev_b32 v2, 7, v2")
    E("v_add_u32 v2, v2, v3")
    E("v_add_u32 v2, s49, v2")
    for gg in range(4):
        E(f"v_xor_b32 v4, {gg<<5}, v2")
        E(f"ds_write_b128 v4, v[{ACC+4*gg}:{ACC+4*gg+3}]")
    E("v_lshrrev_b32 v2, 2, v1")
    E("v_and_b32 v3, 3, v1")
    E("v_lshlrev_b32 v3, 1, v3")
    E("v_lshrrev_b32 v4, 3, v1")
    E("v_xor_b32 v3, v3, v4")
    E("v_lshlrev_b32 v3, 4, v3")
    E("v_lshlrev_b32 v2, 7, v2")
    E("v_add_u32 v2, v2, v3")
    E("v_add_u32 v2, s49, v2")
    E("v_xor_b32 v3, 16, v2")
    E("s_waitcnt lgkmcnt(0)")
    R = ET + 8
    for i in range(2):
        E(f"ds_read_b128 v[{R+8*i}:{R+8*i+3}], v2 offset:{i*2048}")
        E(f"ds_read_b128 v[{R+8*i+4}:{R+8*i+7}], v3 offset:{i*2048}")
    E("s_waitcnt vmcnt(0) lgkmcnt(0)")
    for i in range(2):
        for j in range(4):
            x = ET + 4 * i + j
            E(f"v_lshlrev_b32 v4, 16, v{x}")
            E(f"v_and_b32 v5, 0xffff0000, v{x}")
            E(f"v_add_f32 v4, v4, v{R+8*i+2*j}")
            E(f"v_add_f32 v5, v5, v{R+8*i+2*j+1}")
            E(f"v_cvt_pk_bf16_f32 v{x}, v4, v5")
        E(f"buffer_store_dwordx4 v[{ET+4*i}:{ET+4*i+3}], v9, s[16:19], {'s45' if i == 0 else 's46'} offen")
    rt_end(1)
    E("s_endpgm")
    E("L_s2_loader:")
    E("s_sub_u32 s3, s3, 4")
    E("s_lshr_b32 s34, s3, 1")
    E("s_and_b32 s35, s3, 1")
    E("s_lshl_b32 s28, s3, 13")
    E(f"s_mul_i32 s42, s41, {64*LDZ}")
    E(f"s_add_u32 s42, s42, {V_OFF}")
    E(f"s_sub_u32 s46, {V_OFF + V_SZ}, s42")
    E(f"s_mul_i32 s43, s40, {64*LDZ}")
    E(f"s_add_u32 s43, s43, {Z_OFF}")
    E(f"s_sub_u32 s47, {Z_OFF + Z_SZ}, s43")
    E("s_cmp_eq_u32 s34, 1")
    E("s_cselect_b32 s42, s43, s42")
    E("s_cselect_b32 s46, s47, s46")
    add64(38, "s4", "s5", "s42")
    srd(8, "s38", "s39", "s46")
    E("s_lshl_b32 s24, s35, 7")
    E(f"s_add_u32 s25, s24, {32*LDZ}")
    dma_setup_nt(LDZ)
    grp = [("s[8:11]", "s24", "s28", 0, VOFF), ("s[8:11]", "s25", "s28", 4096, VOFF)]
    L = 8

    def issue(stage):
        g.dma(stage % NS, grp)
        E("s_add_u32 s24, s24, 256")
        E("s_add_u32 s25, s25, 256")

    for st in range(NS - 1):
        issue(st)
    for k in range(NSTEP):
        vm = (min(k + NS - 2, NSTEP - 1) - k) * L
        E(f"s_waitcnt vmcnt({vm})")
        E("s_barrier")
        if k + NS - 1 < NSTEP:
            issue(k + NS - 1)
    E("L_s2_done:")
    E("s_endpgm")


def desc(name, vgpr, sgpr):
    E(".p2align 6")
    E(f".amdhsa_kernel {name}")
    E(f"  .amdhsa_next_free_vgpr {vgpr}")
    E(f"  .amdhsa_next_free_sgpr {sgpr}")
    E(f"  .amdhsa_accum_offset {(vgpr+3)//4*4}")
    E("  .amdhsa_group_segment_fixed_size 0")
    E("  .amdhsa_kernarg_size 96")
    E("  .amdhsa_user_sgpr_count 2")
    E("  .amdhsa_user_sgpr_kernarg_segment_ptr 1")
    E("  .amdhsa_system_sgpr_workgroup_id_x 1")
    E("  .amdhsa_float_denorm_mode_32 3")
    E(".end_amdhsa_kernel")


def main():
    hdr = open(f"cdna_kernels/{NAME}.s.ref").read().split("\n")
    for line in hdr:
        if line.startswith(";") and "@launch" not in line and "Override launch" not in line and "grid=ceil" not in line:
            E(line)
        elif not line.startswith(";"):
            break
    E(f"; @launch kernel=prep_kernel grid=({NPREP},1,1) block=(256,1,1) lds=16384")
    E(f"; @launch kernel=stage1_kernel grid=({NST1},1,1) block=(512,1,1) lds={NS*STAGE+32768}")
    E(f"; @launch kernel=stage2_kernel grid=({NST2},1,1) block=(512,1,1) lds={NS*STAGE+32768}")
    E('.amdgcn_target "amdgcn-amd-amdhsa--gfx950"')
    E(".text")
    gen_prep()
    gen_stage1()
    gen_stage2()
    E('.section .rodata,"a"')
    desc("prep_kernel", 80, 100)
    desc("stage1_kernel", 200, 100)
    desc("stage2_kernel", 200, 100)
    open(os.environ.get("OUT", f"cdna_kernels/{NAME}.s"), "w").write("\n".join(out) + "\n")


if __name__ == "__main__":
    main()
```

```python
import struct, os

EXP = os.environ.get("EXP", "")
NAME = "parallel_sum__spectral_fnet__geglu_ffn__prompt"
S_, D_, F_ = 2048, 512, 1376
FP = 1408
KZ = 2432
LDZ = KZ * 2
LDW = F_ * 2
XN_OFF = 0x000000
V_OFF = 0x200000
Z_OFF = 0x500000
XN_SZ = S_ * D_ * 2
V_SZ = D_ * LDZ
Z_SZ = S_ * LDZ

out = []


def E(s=""):
    out.append(s)


def f32(x):
    return "0x%08x" % struct.unpack("<I", struct.pack("<f", x))[0]


def srd(reg, lo, hi, size):
    E(f"s_mov_b32 s{reg}, {lo}")
    E(f"s_and_b32 s{reg+1}, {hi}, 0xffff")
    E(f"s_mov_b32 s{reg+2}, {size}")
    E(f"s_mov_b32 s{reg+3}, 0x00020000")


def add64(dlo, slo, shi, off):
    E(f"s_add_u32 s{dlo}, {slo}, {off}")
    E(f"s_addc_u32 s{dlo+1}, {shi}, 0")


NRT = [0]


def rt_begin():
    if "rt" not in EXP:
        return
    E("s_memrealtime s[92:93]")
    E("s_memtime s[96:97]")


def rt_end(slot):
    if "rt" not in EXP:
        return
    lab = f"L_rt{NRT[0]}"
    NRT[0] += 1
    E("s_waitcnt vmcnt(0) lgkmcnt(0)")
    E("s_memrealtime s[94:95]")
    E("s_memtime s[98:99]")
    E("s_cmp_lg_u32 s3, 0")
    E(f"s_cbranch_scc1 {lab}")
    E("s_load_dwordx2 s[60:61], s[0:1], 88")
    E("s_waitcnt lgkmcnt(0)")
    E(f"s_add_u32 s64, s60, {0x1E00000 + slot*0x10000}")
    E("s_addc_u32 s65, s61, 0")
    E("s_and_b32 s65, s65, 0xffff")
    E("s_mov_b32 s66, 0x10000")
    E("s_mov_b32 s67, 0x00020000")
    E("s_lshl_b32 s62, s2, 4")
    E("v_mov_b32 v2, s62")
    E("v_mov_b32 v4, s92")
    E("v_mov_b32 v5, s94")
    E("s_sub_u32 s62, s98, s96")
    E("v_mov_b32 v6, s62")
    E("v_mov_b32 v7, 0")
    E("buffer_store_dwordx4 v[4:7], v2, s[64:67], 0 offen")
    E(f"{lab}:")


def wave_ids():
    rt_begin()
    E("v_and_b32 v1, 63, v0")
    E("v_lshrrev_b32 v2, 6, v0")
    E("s_nop 0")
    E("v_readfirstlane_b32 s3, v2")
    E("s_nop 3")


N_LN = 256
N_TR = 0
N_CP = 0
N_PF = 82
NPREP = N_LN + N_TR + N_CP + N_PF


def gen_prep():
    E(".p2align 8")
    E(".globl prep_kernel")
    E(".type prep_kernel,@function")
    E("prep_kernel:")
    E(f"s_cmp_ge_u32 s2, {NPREP}")
    E("s_cbranch_scc1 L_prep_done")
    E("s_load_dwordx2 s[4:5], s[0:1], 88")
    wave_ids()
    E(f"s_cmp_lt_u32 s2, {N_LN}")
    E("s_cbranch_scc1 L_prep_ln")
    E(f"s_cmp_lt_u32 s2, {N_LN + N_TR}")
    E("s_cbranch_scc1 L_prep_tr")
    E(f"s_cmp_lt_u32 s2, {N_LN + N_TR + N_CP}")
    E("s_cbranch_scc1 L_prep_copy")
    E(f"s_sub_u32 s20, s2, {N_LN + N_TR + N_CP}")
    E("s_movk_i32 s21, 48")
    E("s_mov_b32 s22, 0")
    E(f"s_mov_b32 s23, {D_*LDW}")
    for lim, off, sz in ((22, 56, D_ * LDW), (44, 64, F_ * D_ * 2), (66, 24, D_ * D_ * 2), (74, 32, D_ * D_ * 2)):
        E(f"s_cmp_ge_u32 s20, {lim}")
        E(f"s_cselect_b32 s21, {off}, s21")
        E(f"s_cselect_b32 s22, {lim}, s22")
        E(f"s_cselect_b32 s23, {sz}, s23")
    E("s_load_dwordx2 s[6:7], s[0:1], s21")
    E("s_sub_u32 s20, s20, s22")
    E("s_waitcnt lgkmcnt(0)")
    srd(8, "s6", "s7", "s23")
    E("s_lshl_b32 s22, s20, 16")
    E("s_lshl_b32 s23, s3, 14")
    E("s_add_u32 s22, s22, s23")
    E("v_lshlrev_b32 v3, 4, v1")
    for i in range(16):
        E(f"buffer_load_dwordx4 v[{16+4*i}:{16+4*i+3}], v3, s[8:11], s22 offen offset:{(i%4)*1024}")
        if i % 4 == 3:
            E("s_add_u32 s22, s22, 4096")
    E("s_endpgm")

    NR = 2
    E("L_prep_ln:")
    E("s_load_dwordx2 s[6:7], s[0:1], 0")
    E("s_waitcnt lgkmcnt(0)")
    srd(8, "s6", "s7", XN_SZ)
    add64(24, "s4", "s5", XN_OFF)
    srd(12, "s24", "s25", XN_SZ)
    E("s_lshl_b32 s20, s2, 13")
    E("s_lshl_b32 s22, s3, 11")
    E("s_add_u32 s20, s20, s22")
    E("v_lshlrev_b32 v3, 4, v1")
    P0, X0, R0, M0r, T0, U0, W0 = 16, 32, 48, 52, 56, 60, 64
    for i in range(NR):
        E(f"buffer_load_dwordx4 v[{P0+4*i}:{P0+4*i+3}], v3, s[8:11], s20 offen offset:{i*1024}")
    for i in range(NR):
        E(f"s_waitcnt vmcnt({NR-1-i})")
        for j in range(4):
            E(f"v_lshlrev_b32 v{X0+8*i+2*j}, 16, v{P0+4*i+j}")
            E(f"v_and_b32 v{X0+8*i+2*j+1}, 0xffff0000, v{P0+4*i+j}")

    def wave_reduce(base):
        for ctl in ["row_shr:1 row_mask:0xf bank_mask:0xf bound_ctrl:0",
                    "row_shr:2 row_mask:0xf bank_mask:0xf bound_ctrl:0",
                    "row_shr:4 row_mask:0xf bank_mask:0xf bound_ctrl:0",
                    "row_shr:8 row_mask:0xf bank_mask:0xf bound_ctrl:0",
                    "row_bcast:15 row_mask:0xa bank_mask:0xf",
                    "row_bcast:31 row_mask:0xc bank_mask:0xf"]:
            E("s_nop 0")
            for i in range(NR):
                E(f"v_add_f32_dpp v{base+i}, v{base+i}, v{base+i} {ctl}")
        E("s_nop 0")
        for i in range(NR):
            E(f"v_readlane_b32 s{32+i}, v{base+i}, 63")
        E("s_nop 1")

    for i in range(NR):
        E(f"v_add_f32 v{R0+i}, v{X0+8*i}, v{X0+8*i+1}")
    for j in range(2, 8):
        for i in range(NR):
            E(f"v_add_f32 v{R0+i}, v{R0+i}, v{X0+8*i+j}")
    wave_reduce(R0)
    for i in range(NR):
        E(f"v_mov_b32 v{M0r+i}, s{32+i}")
    for i in range(NR):
        E(f"v_mul_f32 v{M0r+i}, {f32(1.0/512)}, v{M0r+i}")
    for j in range(8):
        for i in range(NR):
            E(f"v_sub_f32 v{T0+i}, v{X0+8*i+j}, v{M0r+i}")
        for i in range(NR):
            if j == 0:
                E(f"v_mul_f32 v{R0+i}, v{T0+i}, v{T0+i}")
            else:
                E(f"v_fmac_f32 v{R0+i}, v{T0+i}, v{T0+i}")
    wave_reduce(R0)
    for i in range(NR):
        E(f"v_mov_b32 v{T0+i}, s{32+i}")
    for i in range(NR):
        E(f"v_mul_f32 v{T0+i}, {f32(1.0/512)}, v{T0+i}")
    for i in range(NR):
        E(f"v_cvt_pk_bf16_f32 v{U0+i}, v{T0+i}, v{M0r+i}")
    for i in range(NR):
        E(f"v_lshlrev_b32 v{T0+i}, 16, v{U0+i}")
        E(f"v_and_b32 v{M0r+i}, 0xffff0000, v{U0+i}")
    for i in range(NR):
        E(f"v_add_f32 v{T0+i}, {f32(1e-5)}, v{T0+i}")
    for i in range(NR):
        E(f"v_cvt_pk_bf16_f32 v{U0+i}, v{T0+i}, v{T0+i}")
    for i in range(NR):
        E(f"v_lshlrev_b32 v{T0+i}, 16, v{U0+i}")
    for i in range(NR):
        E(f"v_sqrt_f32 v{T0+i}, v{T0+i}")
    E("s_nop 0")
    for i in range(NR):
        E(f"v_cvt_pk_bf16_f32 v{U0+i}, v{T0+i}, v{T0+i}")
    for i in range(NR):
        E(f"v_lshlrev_b32 v{T0+i}, 16, v{U0+i}")
    for i in range(NR):
        E(f"v_rcp_f32 v{W0+i}, v{T0+i}")
    E("s_nop 0")
    for i in range(NR):
        for j in range(0, 8, 2):
            a_, b_ = X0 + 8 * i + j, X0 + 8 * i + j + 1
            E(f"v_sub_f32 v{a_}, v{a_}, v{M0r+i}")
            E(f"v_sub_f32 v{b_}, v{b_}, v{M0r+i}")
            E(f"v_cvt_pk_bf16_f32 v4, v{a_}, v{b_}")
            E(f"v_lshlrev_b32 v{a_}, 16, v4")
            E(f"v_and_b32 v{b_}, 0xffff0000, v4")
            E(f"v_mul_f32 v5, v{a_}, v{W0+i}")
            E(f"v_mul_f32 v6, v{b_}, v{W0+i}")
            E(f"v_fma_f32 v7, -v5, v{T0+i}, v{a_}")
            E(f"v_fma_f32 v8, -v6, v{T0+i}, v{b_}")
            E(f"v_fma_f32 v5, v7, v{W0+i}, v5")
            E(f"v_fma_f32 v6, v8, v{W0+i}, v6")
            E(f"v_cvt_pk_bf16_f32 v{P0+4*i+j//2}, v5, v6")
    for i in range(NR):
        E(f"buffer_store_dwordx4 v[{P0+4*i}:{P0+4*i+3}], v3, s[12:15], s20 offen offset:{i*1024}")
    E("s_endpgm")

    E("L_prep_tr:")
    E("s_load_dwordx2 s[28:29], s[0:1], 64")
    E(f"s_sub_u32 s20, s2, {N_LN}")
    E("s_waitcnt lgkmcnt(0)")
    E("s_lshr_b32 s22, s20, 2")
    E("s_and_b32 s23, s20, 3")
    srd(8, "s28", "s29", F_ * D_ * 2)
    add64(24, "s4", "s5", V_OFF)
    srd(12, "s24", "s25", V_SZ)
    E("v_lshrrev_b32 v3, 4, v1")
    E("v_and_b32 v4, 15, v1")
    E("v_lshlrev_b32 v5, 10, v3")
    E("v_lshlrev_b32 v6, 4, v4")
    E("v_add_u32 v5, v5, v6")
    E("s_lshl_b32 s24, s22, 6")
    E("s_lshl_b32 s25, s3, 4")
    E("s_add_u32 s24, s24, s25")
    E("s_lshl_b32 s24, s24, 10")
    E("s_lshl_b32 s25, s23, 8")
    E("s_add_u32 s24, s24, s25")
    E("v_and_b32 v8, 127, v0")
    E("s_lshl_b32 s31, s23, 7")
    E("v_add_u32 v8, s31, v8")
    E(f"s_movk_i32 s25, {LDZ}")
    E("v_mul_lo_u32 v8, v8, s25")
    E("s_lshl_b32 s31, s22, 7")
    E("s_add_u32 s31, s31, 2048")
    for i in range(4):
        E(f"buffer_load_dwordx4 v[{16+4*i}:{16+4*i+3}], v5, s[8:11], s24 offen")
        E("s_add_u32 s24, s24, 4096")
    E("v_lshlrev_b32 v9, 12, v2")
    E("v_lshlrev_b32 v10, 4, v1")
    E("v_add_u32 v9, v9, v10")
    E("v_lshrrev_b32 v10, 7, v0")
    E("v_lshlrev_b32 v11, 6, v10")
    E("v_add_u32 v8, v8, v11")
    E("v_lshlrev_b32 v10, 13, v10")
    E("v_and_b32 v11, 127, v0")
    E("v_lshlrev_b32 v11, 1, v11")
    E("v_add_u32 v10, v10, v11")
    for i in range(4):
        E(f"s_waitcnt vmcnt({3-i})")
        E(f"ds_write_b128 v9, v[{16+4*i}:{16+4*i+3}] offset:{i*1024}")
    E("s_waitcnt lgkmcnt(0)")
    E("s_barrier")
    for j in range(32):
        E(f"ds_read_u16 v{32+j}, v10 offset:{j*256}")
    for i in range(16):
        if i % 4 == 0:
            E(f"s_waitcnt lgkmcnt({min(15, 24 - 2*i)})")
        E(f"v_lshl_or_b32 v{32+i}, v{32+2*i+1}, 16, v{32+2*i}")
        if i % 4 == 3:
            E(f"buffer_store_dwordx4 v[{32+i-3}:{32+i}], v8, s[12:15], s31 offen offset:{(i//4)*16}")
    E("s_endpgm")

    E("L_prep_copy:")
    E("s_load_dwordx2 s[6:7], s[0:1], 24")
    E("s_load_dwordx2 s[26:27], s[0:1], 32")
    E(f"s_sub_u32 s20, s2, {N_LN + N_TR}")
    E("s_lshr_b32 s21, s20, 3")
    E("s_and_b32 s20, s20, 7")
    E("s_waitcnt lgkmcnt(0)")
    E("s_cmp_eq_u32 s21, 1")
    E("s_cselect_b32 s6, s26, s6")
    E("s_cselect_b32 s7, s27, s7")
    E("s_cselect_b32 s28, 0x80008000, 0")
    srd(8, "s6", "s7", D_ * D_ * 2)
    add64(24, "s4", "s5", V_OFF)
    srd(12, "s24", "s25", V_SZ)
    E("s_lshl_b32 s22, s20, 6")
    E("s_add_u32 s22, s22, s3")
    E("s_lshl_b32 s23, s22, 10")
    E(f"s_mul_i32 s24, s22, {LDZ}")
    E("s_lshl_b32 s25, s21, 10")
    E("s_add_u32 s24, s24, s25")
    E("v_lshlrev_b32 v3, 4, v1")
    for i in range(16):
        E(f"buffer_load_dwordx4 v[{16+4*i}:{16+4*i+3}], v3, s[8:11], s23 offen")
        E("s_add_u32 s23, s23, 4096")
    for i in range(16):
        E("s_waitcnt vmcnt(15)")
        for j in range(4):
            E(f"v_xor_b32 v{16+4*i+j}, s28, v{16+4*i+j}")
        E(f"buffer_store_dwordx4 v[{16+4*i}:{16+4*i+3}], v3, s[12:15], s24 offen")
        E(f"s_add_u32 s24, s24, {4*LDZ}")
    E("L_prep_done:")
    E("s_endpgm")


STAGE = 32768
NS = 4
STG_OFF = NS * STAGE
VOFF = 10
VOFA = 16
VA = 16
VB = 24
VF = 32
ACC = 96
ET = 160


def dma_setup_nt(ld):
    E("v_lshrrev_b32 v2, 3, v1")
    E("v_lshrrev_b32 v3, 4, v1")
    E("v_and_b32 v4, 7, v1")
    E(f"s_movk_i32 s29, {ld}")
    for i in range(4):
        E(f"v_add_u32 v5, {8*i}, v2")
        E("v_mul_lo_u32 v5, v5, s29")
        E(f"v_add_u32 v6, {4*i}, v3")
        E("v_and_b32 v6, 7, v6")
        E("v_xor_b32 v6, v6, v4")
        E("v_lshlrev_b32 v6, 4, v6")
        E("v_add_u32 v5, v5, v6")
        if i:
            E(f"v_subrev_u32 v5, {i*1024}, v5")
        E(f"v_mov_b32 v{VOFF+i}, v5")


def dma_setup_tr256(ld):
    E("v_lshrrev_b32 v2, 4, v1")
    E("v_and_b32 v3, 15, v1")
    E("v_lshlrev_b32 v4, 2, v2")
    E("v_xor_b32 v3, v3, v4")
    E("v_lshlrev_b32 v3, 4, v3")
    E(f"s_movk_i32 s29, {ld}")
    for i in range(4):
        E(f"v_add_u32 v5, {4*i}, v2")
        E("v_mul_lo_u32 v5, v5, s29")
        E("v_add_u32 v5, v5, v3")
        if i:
            E(f"v_subrev_u32 v5, {i*1024}, v5")
        E(f"v_mov_b32 v{VOFA+i}, v5")


def dma_setup_tr128(ld):
    E("v_lshrrev_b32 v2, 3, v1")
    E("v_and_b32 v3, 7, v1")
    E("v_lshrrev_b32 v4, 4, v1")
    E("v_and_b32 v4, 1, v4")
    E("v_lshlrev_b32 v4, 2, v4")
    E("v_xor_b32 v3, v3, v4")
    E("v_lshlrev_b32 v3, 4, v3")
    E(f"s_movk_i32 s29, {ld}")
    for i in range(4):
        E(f"v_add_u32 v5, {8*i}, v2")
        E("v_mul_lo_u32 v5, v5, s29")
        E("v_add_u32 v5, v5, v3")
        if i:
            E(f"v_subrev_u32 v5, {i*1024}, v5")
        E(f"v_mov_b32 v{VOFA+i}, v5")


def frag_setup_nt(base_reg, wrow):
    E("v_and_b32 v2, 31, v1")
    E("v_lshrrev_b32 v3, 5, v1")
    E("v_lshrrev_b32 v4, 1, v2")
    E("v_and_b32 v4, 7, v4")
    E("v_xor_b32 v4, v4, v3")
    E("v_lshlrev_b32 v4, 4, v4")
    E("v_lshlrev_b32 v5, 7, v2")
    E("v_add_u32 v4, v4, v5")
    E(f"s_lshl_b32 s30, {wrow}, 7")
    for j in range(4):
        E(f"v_xor_b32 v5, {j*32}, v4")
        E(f"v_add_u32 v{base_reg+j}, s30, v5")
        E(f"v_add_u32 v{base_reg+4+j}, 0x10000, v{base_reg+j}")


def frag_setup_tr256(wm):
    E("v_and_b32 v2, 15, v1")
    E("v_lshrrev_b32 v2, 2, v2")
    E("v_lshrrev_b32 v3, 5, v1")
    E("v_lshlrev_b32 v3, 3, v3")
    E("v_add_u32 v3, v3, v2")
    E("v_lshlrev_b32 v3, 8, v3")
    E("v_lshrrev_b32 v4, 4, v1")
    E("v_and_b32 v4, 1, v4")
    E("v_lshlrev_b32 v4, 1, v4")
    E("v_and_b32 v5, 3, v1")
    E("v_lshrrev_b32 v5, 1, v5")
    E("v_add_u32 v4, v4, v5")
    E(f"s_lshl_b32 s30, {wm}, 3")
    E("v_add_u32 v4, s30, v4")
    E("v_lshlrev_b32 v5, 2, v2")
    E("v_xor_b32 v4, v4, v5")
    E("v_lshlrev_b32 v4, 4, v4")
    E("v_add_u32 v3, v3, v4")
    E("v_and_b32 v4, 1, v1")
    E("v_lshlrev_b32 v4, 3, v4")
    E(f"v_add_u32 v{VA}, v3, v4")
    E(f"v_xor_b32 v{VA+1}, 64, v{VA}")
    E(f"v_add_u32 v{VA+2}, 0x10000, v{VA}")
    E(f"v_add_u32 v{VA+3}, 0x10000, v{VA+1}")


def frag_setup_tr128(wm):
    E("v_and_b32 v2, 15, v1")
    E("v_lshrrev_b32 v2, 2, v2")
    E("v_lshrrev_b32 v3, 5, v1")
    E("v_lshlrev_b32 v3, 3, v3")
    E("v_add_u32 v3, v3, v2")
    E("v_lshlrev_b32 v3, 7, v3")
    E("v_lshrrev_b32 v4, 4, v1")
    E("v_and_b32 v4, 1, v4")
    E("v_lshlrev_b32 v4, 1, v4")
    E("v_and_b32 v5, 3, v1")
    E("v_lshrrev_b32 v5, 1, v5")
    E("v_add_u32 v4, v4, v5")
    E(f"s_lshl_b32 s30, {wm}, 2")
    E("v_add_u32 v4, s30, v4")
    E("v_lshrrev_b32 v5, 3, v1")
    E("v_and_b32 v5, 1, v5")
    E("v_lshlrev_b32 v5, 2, v5")
    E("v_xor_b32 v4, v4, v5")
    E("v_lshlrev_b32 v4, 4, v4")
    E("v_add_u32 v3, v3, v4")
    E("v_and_b32 v4, 1, v1")
    E("v_lshlrev_b32 v4, 3, v4")
    E(f"v_add_u32 v{VA}, v3, v4")
    E(f"v_add_u32 v{VA+1}, 0x10000, v{VA}")


class Gemm:
    def __init__(self, BM, BN, KP, amode):
        self.BM, self.BN, self.KP, self.amode = BM, BN, KP, amode
        self.nsub = 4 * KP
        self.fsz = (BM + BN) * 4
        self.panel = 16384 // KP
        self.nr = BN + (BM if amode == "nt" else 2 * BM)

    def dma(self, slot, groups):
        for (sr, so, mb, mi, vo) in groups:
            E(f"s_add_u32 m0, {mb}, {slot*STAGE + mi}")
            E("s_nop 0")
            for i in range(4):
                E(f"buffer_load_dwordx4 v{vo+i}, {sr}, {so} offen offset:{i*1024} lds")

    def reads(self, slot, sub, st):
        p, j = sub // 4, sub % 4
        half = slot // 2
        base = (slot % 2) * STAGE
        for bm in range(self.BM):
            r = VF + st * self.fsz + bm * 4
            if self.amode == "nt":
                E(f"ds_read_b128 v[{r}:{r+3}], v{VA+half*4+j} offset:{base + p*self.panel + bm*4096}")
            elif self.amode == "tr256":
                for q in range(2):
                    E(f"ds_read_b64_tr_b16 v[{r+2*q}:{r+2*q+1}], v{VA+half*2+bm} offset:{base + j*4096 + q*1024}")
            else:
                for q in range(2):
                    E(f"ds_read_b64_tr_b16 v[{r+2*q}:{r+2*q+1}], v{VA+half} offset:{base + bm*8192 + j*2048 + q*512}")
        for bn in range(self.BN):
            r = VF + st * self.fsz + self.BM * 4 + bn * 4
            E(f"ds_read_b128 v[{r}:{r+3}], v{VB+half*4+j} offset:{base + 16384 + p*self.panel + bn*4096}")

    def mfmas(self, st):
        for bm in range(self.BM):
            for bn in range(self.BN):
                a = VF + st * self.fsz + bm * 4
                b = VF + st * self.fsz + self.BM * 4 + bn * 4
                c = ACC + (bm * self.BN + bn) * 16
                E(f"v_mfma_f32_32x32x16_bf16 v[{c}:{c+15}], v[{a}:{a+3}], v[{b}:{b+3}], v[{c}:{c+15}]")

    def zero_acc(self):
        for r in range(ACC, ACC + self.BM * self.BN * 16):
            E(f"v_mov_b32 v{r}, 0")

    def cons_step(self, slot, PD, nxt):
        n = self.nsub
        nslot = (slot + 1) % NS
        for u in range(n):
            st = u % 4
            t = u + PD
            if t < n:
                self.reads(slot, t, t % 4)
                E(f"s_waitcnt lgkmcnt({PD*self.nr})")
            else:
                if t == n:
                    E("s_waitcnt lgkmcnt(0)")
                    if nxt == "always":
                        E("s_barrier")
                    elif nxt is not None:
                        E("s_cmp_eq_u32 s27, 0")
                        E(f"s_cbranch_scc1 {nxt}_a")
                        E("s_barrier")
                if nxt is not None:
                    self.reads(nslot, t - n, t % 4)
                    if nxt != "always":
                        E(f"{nxt}_{'a' if t == n else 'b%d' % t}:")
            self.mfmas(st)
            if t >= n and t + 1 < n + PD and nxt not in (None, "always"):
                E("s_cmp_eq_u32 s27, 0")
                E(f"s_cbranch_scc1 {nxt}_b{t+1}")


NBIG = 128
NST1 = 256


def s1_big_tile():
    E("s_and_b32 s40, s2, 7")
    E("s_lshr_b32 s41, s2, 5")
    E("s_lshl_b32 s41, s41, 3")
    E("s_add_u32 s40, s40, s41")
    E("s_lshr_b32 s41, s2, 3")
    E("s_and_b32 s41, s41, 3")


def s1_small_tile(ti):
    E(f"s_sub_u32 s42, s2, {NBIG}")
    E("s_and_b32 s43, s42, 7")
    E("s_lshr_b32 s42, s42, 3")
    E(f"s_lshl_b32 s44, {ti}, 4")
    E("s_add_u32 s42, s42, s44")
    E("s_lshr_b32 s40, s42, 1")
    E("s_and_b32 s42, s42, 1")
    E("s_lshl_b32 s41, s43, 1")
    E("s_add_u32 s41, s41, s42")


def korder():
    if "korder0" in EXP:
        return [(dq, j) for dq in range(4) for j in range(8)]
    seq = [(0, 0), (0, 1)]
    for j in range(6):
        seq += [(1, j), (0, j + 2)]
    seq += [(1, 6), (1, 7)]
    seq += [(dq, j) for dq in (2, 3) for j in range(8)]
    return seq


def gen_stage1():
    E(".p2align 8")
    E(".globl stage1_kernel")
    E(".type stage1_kernel,@function")
    E("stage1_kernel:")
    E(f"s_cmp_ge_u32 s2, {NST1}")
    E("s_cbranch_scc1 L_s1_done")
    E("s_load_dwordx2 s[4:5], s[0:1], 88")
    E("s_load_dwordx2 s[6:7], s[0:1], 8")
    E("s_load_dwordx2 s[32:33], s[0:1], 16")
    E("s_load_dwordx2 s[56:57], s[0:1], 48")
    E("s_load_dwordx2 s[58:59], s[0:1], 56")
    wave_ids()
    E(f"s_sub_u32 s48, s2, {NBIG}")
    E("s_lshr_b32 s48, s48, 3")
    E("s_cmp_lt_u32 s48, 12")
    E("s_cselect_b32 s48, 3, 2")
    E("s_waitcnt lgkmcnt(0)")
    E("s_cmp_ge_u32 s3, 4")
    E("s_cbranch_scc1 L_s1_loader")

    gb = Gemm(2, 2, 1, "tr256")
    gs = Gemm(2, 2, 1, "tr128")
    PD = 2
    E("s_lshr_b32 s34, s3, 1")
    E("s_and_b32 s35, s3, 1")
    E("s_lshl_b32 s36, s34, 6")
    E("s_lshl_b32 s37, s35, 6")
    add64(38, "s4", "s5", Z_OFF)
    srd(16, "s38", "s39", Z_SZ)
    frag_setup_nt(VB, "s37")
    E("s_lshl_b32 s49, s3, 13")
    E(f"s_add_u32 s49, s49, {STG_OFF}")
    E(f"s_cmp_ge_u32 s2, {NBIG}")
    E("s_cbranch_scc1 L_s1c_small")

    frag_setup_tr256("s34")
    gb.zero_acc()
    E("s_barrier")
    for u in range(PD):
        gb.reads(0, u, u)
    E("s_mov_b32 s27, 7")
    E("L_s1c_big_loop:")
    for s in range(NS):
        gb.cons_step(s, PD, "always" if s < NS - 1 else "L_s1cb")
    E("s_sub_u32 s27, s27, 1")
    E("s_cmp_ge_i32 s27, 0")
    E("s_cbranch_scc1 L_s1c_big_loop")
    E("s_nop 15")
    s1_big_tile()
    E("s_cmp_ge_u32 s40, 16")
    E("s_cselect_b32 s44, 512, 0")
    E("s_cselect_b32 s51, 0x80008000, 0")
    E("s_and_b32 s45, s40, 15")
    E("s_lshl_b32 s45, s45, 7")
    E("s_add_u32 s45, s45, s37")
    E(f"s_mul_i32 s45, s45, {LDZ}")
    E("s_lshl_b32 s41, s41, 7")
    E("s_add_u32 s44, s44, s41")
    E("s_add_u32 s44, s44, s36")
    E("s_lshl_b32 s44, s44, 1")
    E("s_add_u32 s45, s45, s44")
    E("v_and_b32 v2, 31, v1")
    E("v_lshrrev_b32 v3, 1, v2")
    E("v_and_b32 v3, 7, v3")
    E("v_lshlrev_b32 v3, 4, v3")
    E("v_lshlrev_b32 v2, 7, v2")
    E("v_add_u32 v2, v2, v3")
    E("v_lshrrev_b32 v3, 5, v1")
    E("v_lshlrev_b32 v3, 3, v3")
    E("v_add_u32 v2, v2, v3")
    E("v_add_u32 v2, s49, v2")
    n = 0
    for bm in range(2):
        for gg in range(4):
            ch = bm * 4 + gg
            E(f"v_xor_b32 v4, {ch<<4}, v2")
            for bn in range(2):
                c = ACC + (bm * 2 + bn) * 16
                t = ET + (n % 8) * 2
                n += 1
                E(f"v_cvt_pk_bf16_f32 v{t}, v{c+4*gg}, v{c+4*gg+1}")
                E(f"v_cvt_pk_bf16_f32 v{t+1}, v{c+4*gg+2}, v{c+4*gg+3}")
                E(f"v_xor_b32 v{t}, s51, v{t}")
                E(f"v_xor_b32 v{t+1}, s51, v{t+1}")
                E(f"ds_write_b64 v4, v[{t}:{t+1}] offset:{bn*4096}")
    E("v_lshrrev_b32 v2, 3, v1")
    E("v_and_b32 v3, 7, v1")
    E("v_lshrrev_b32 v4, 4, v1")
    E("v_xor_b32 v4, v4, v3")
    E("v_lshlrev_b32 v4, 4, v4")
    E("v_lshlrev_b32 v5, 7, v2")
    E("v_add_u32 v4, v4, v5")
    E("v_add_u32 v4, s49, v4")
    E("v_xor_b32 v5, 64, v4")
    E(f"s_movk_i32 s29, {LDZ}")
    E("v_mul_lo_u32 v6, v2, s29")
    E("v_lshlrev_b32 v3, 4, v3")
    E("v_add_u32 v6, v6, v3")
    E("s_waitcnt lgkmcnt(0)")
    for i in range(8):
        E(f"ds_read_b128 v[{ET+4*i}:{ET+4*i+3}], v{4 + (i&1)} offset:{i*1024}")
    for i in range(8):
        E(f"s_waitcnt lgkmcnt({7-i})")
        E(f"buffer_store_dwordx4 v[{ET+4*i}:{ET+4*i+3}], v6, s[16:19], s45 offen")
        E(f"s_add_u32 s45, s45, {8*LDZ}")
    rt_end(0)
    E("s_endpgm")

    E("L_s1c_small:")
    frag_setup_tr128("s34")
    CK = -2.0 * 0.7978845608028654 * 1.4426950408889634
    E(f"s_mov_b32 s46, {f32(0.044715*CK)}")
    E(f"s_mov_b32 s47, {f32(0.044715*CK)}")
    E(f"v_mov_b32 v14, {f32(CK)}")
    E(f"v_mov_b32 v15, {f32(CK)}")
    E("s_mov_b32 s54, 1.0")
    E("s_mov_b32 s55, 1.0")
    E("s_mov_b32 s50, 0")
    E("s_lshl_b32 s27, s48, 1")
    E("s_sub_u32 s27, s27, 1")
    E("v_and_b32 v2, 31, v1")
    E("v_lshrrev_b32 v3, 2, v2")
    E("v_and_b32 v3, 3, v3")
    E("v_lshlrev_b32 v3, 4, v3")
    E("v_lshlrev_b32 v2, 6, v2")
    E("v_add_u32 v2, v2, v3")
    E("v_lshrrev_b32 v3, 5, v1")
    E("v_lshlrev_b32 v3, 3, v3")
    E("v_add_u32 v2, v2, v3")
    E("v_add_u32 v7, s49, v2")
    E("v_lshrrev_b32 v2, 2, v1")
    E("v_and_b32 v3, 3, v1")
    E("v_lshrrev_b32 v4, 4, v1")
    E("v_and_b32 v4, 3, v4")
    E("v_xor_b32 v4, v4, v3")
    E("v_lshlrev_b32 v4, 4, v4")
    E("v_lshlrev_b32 v5, 6, v2")
    E("v_add_u32 v4, v4, v5")
    E("v_add_u32 v8, s49, v4")
    E(f"s_movk_i32 s29, {LDZ}")
    E("v_mul_lo_u32 v9, v2, s29")
    E("v_lshlrev_b32 v3, 4, v3")
    E("v_add_u32 v9, v9, v3")
    E("s_barrier")
    for u in range(PD):
        gs.reads(0, u, u)
    E("L_s1c_tile:")
    gs.zero_acc()
    for rep in range(2):
        for s in range(NS):
            gs.cons_step(s, PD, "always" if s < NS - 1 else f"L_s1cs{rep}")
        E("s_sub_u32 s27, s27, 1")
    E("s_nop 15")
    s1_small_tile("s50")
    E("s_lshl_b32 s45, s41, 7")
    E("s_add_u32 s45, s45, s37")
    E(f"s_mul_i32 s45, s45, {LDZ}")
    E("s_lshl_b32 s44, s40, 1")
    E("s_add_u32 s44, s44, s34")
    E("s_lshl_b32 s44, s44, 6")
    E("s_add_u32 s45, s45, s44")
    E("s_add_u32 s45, s45, 2048")
    for bn in range(2):
        cg = ACC + (0 * 2 + bn) * 16
        cu = ACC + (1 * 2 + bn) * 16
        for gp in range(2):
            G = ET + 16 * gp
            for q in range(2):
                gg = gp * 2 + q
                T = G + 4 * q
                for r in range(0, 4, 2):
                    E(f"v_pk_mul_f32 v[{T+r}:{T+r+1}], v[{cg+4*gg+r}:{cg+4*gg+r+1}], v[{cg+4*gg+r}:{cg+4*gg+r+1}]")
            for q in range(2):
                T = G + 4 * q
                for r in range(0, 4, 2):
                    E(f"v_pk_fma_f32 v[{T+r}:{T+r+1}], v[{T+r}:{T+r+1}], s[46:47], v[14:15]")
            for q in range(2):
                gg = gp * 2 + q
                T = G + 4 * q
                for r in range(0, 4, 2):
                    E(f"v_pk_mul_f32 v[{T+r}:{T+r+1}], v[{T+r}:{T+r+1}], v[{cg+4*gg+r}:{cg+4*gg+r+1}]")
            for r in range(8):
                E(f"v_exp_f32 v{G+r}, v{G+r}")
            for r in range(0, 8, 2):
                E(f"v_pk_add_f32 v[{G+r}:{G+r+1}], v[{G+r}:{G+r+1}], s[54:55]")
            for r in range(8):
                E(f"v_rcp_f32 v{G+r}, v{G+r}")
            for q in range(2):
                gg = gp * 2 + q
                T = G + 8 + 4 * q
                for r in range(0, 4, 2):
                    E(f"v_pk_mul_f32 v[{T+r}:{T+r+1}], v[{cg+4*gg+r}:{cg+4*gg+r+1}], v[{cu+4*gg+r}:{cu+4*gg+r+1}]")
            for r in range(0, 8, 2):
                E(f"v_pk_mul_f32 v[{G+r}:{G+r+1}], v[{G+r}:{G+r+1}], v[{G+8+r}:{G+8+r+1}]")
            for q in range(2):
                gg = gp * 2 + q
                t = G + 8 + 2 * q
                E(f"v_cvt_pk_bf16_f32 v{t}, v{G+4*q}, v{G+4*q+1}")
                E(f"v_cvt_pk_bf16_f32 v{t+1}, v{G+4*q+2}, v{G+4*q+3}")
                E(f"v_xor_b32 v{G+12+q}, {gg<<4}, v7")
                E(f"ds_write_b64 v{G+12+q}, v[{t}:{t+1}] offset:{bn*2048}")
    E("s_waitcnt lgkmcnt(0)")
    for i in range(4):
        E(f"ds_read_b128 v[{ET+4*i}:{ET+4*i+3}], v8 offset:{i*1024}")
    for i in range(4):
        E(f"s_waitcnt lgkmcnt({3-i})")
        E(f"buffer_store_dwordx4 v[{ET+4*i}:{ET+4*i+3}], v9, s[16:19], s45 offen")
        E(f"s_add_u32 s45, s45, {16*LDZ}")
    E("s_add_u32 s50, s50, 1")
    E("s_cmp_lt_u32 s50, s48")
    E("s_cbranch_scc1 L_s1c_tile")
    rt_end(0)
    E("s_endpgm")

    L = 8
    E("L_s1_loader:")
    E("s_sub_u32 s3, s3, 4")
    E("s_lshl_b32 s28, s3, 12")
    E(f"s_cmp_ge_u32 s2, {NBIG}")
    E("s_cbranch_scc1 L_s1l_small")
    s1_big_tile()
    E("s_lshl_b32 s42, s41, 8")
    E("s_lshl_b32 s43, s3, 14")
    E("s_add_u32 s42, s42, s43")
    E(f"s_add_u32 s43, s42, {XN_OFF}")
    add64(38, "s4", "s5", "s43")
    E(f"s_sub_u32 s43, {XN_SZ}, s42")
    srd(8, "s38", "s39", "s43")
    E("s_cmp_ge_u32 s40, 16")
    E("s_cselect_b32 s6, s32, s6")
    E("s_cselect_b32 s7, s33, s7")
    E("s_and_b32 s45, s40, 15")
    E("s_lshl_b32 s42, s45, 7")
    E("s_lshl_b32 s43, s3, 5")
    E("s_add_u32 s42, s42, s43")
    E("s_lshl_b32 s42, s42, 12")
    add64(38, "s6", "s7", "s42")
    E(f"s_sub_u32 s43, {S_*S_*2}, s42")
    srd(12, "s38", "s39", "s43")
    dma_setup_nt(4096)
    dma_setup_tr256(1024)
    grp = [("s[8:11]", "s24", "s28", 0, VOFA), ("s[12:15]", "s25", "s28", 16384, VOFF)]
    seq = korder()

    def big_issue(stage):
        dq, j = seq[stage]
        E(f"s_add_u32 s24, s41, {dq}")
        E("s_and_b32 s24, s24, 3")
        E("s_lshl_b32 s24, s24, 3")
        E(f"s_add_u32 s24, s24, {j}")
        E("s_lshl_b32 s25, s24, 7")
        E("s_lshl_b32 s24, s24, 16")
        gb.dma(stage % NS, grp)

    for st in range(NS - 1):
        big_issue(st)
    for k in range(32):
        vm = (min(k + NS - 2, 31) - k) * L
        E(f"s_waitcnt vmcnt({vm})")
        E("s_barrier")
        if k + NS - 1 < 32:
            big_issue(k + NS - 1)
    E("s_endpgm")

    def small_srds():
        s1_small_tile("s50")
        E("s_lshr_b32 s42, s3, 1")
        E("s_cmp_eq_u32 s42, 1")
        E("s_cselect_b32 s60, s58, s56")
        E("s_cselect_b32 s61, s59, s57")
        E("s_and_b32 s42, s3, 1")
        E(f"s_mul_i32 s42, s42, {32*LDW}")
        E("s_lshl_b32 s43, s40, 7")
        E("s_add_u32 s42, s42, s43")
        add64(38, "s60", "s61", "s42")
        E(f"s_sub_u32 s43, {D_*LDW}, s42")
        srd(8, "s38", "s39", "s43")
        E("s_lshl_b32 s42, s41, 7")
        E("s_lshl_b32 s43, s3, 5")
        E("s_add_u32 s42, s42, s43")
        E("s_lshl_b32 s42, s42, 10")
        E(f"s_add_u32 s43, s42, {XN_OFF}")
        add64(38, "s4", "s5", "s43")
        E(f"s_sub_u32 s43, {XN_SZ}, s42")
        srd(12, "s38", "s39", "s43")
        E("s_mov_b32 s24, 0")
        E("s_mov_b32 s25, 0")

    def small_issue(slot):
        gs.dma(slot, grp)
        E(f"s_add_u32 s24, s24, {64*LDW}")
        E("s_add_u32 s25, s25, 128")

    E("L_s1l_small:")
    E("s_mov_b32 s50, 0")
    small_srds()
    dma_setup_nt(1024)
    dma_setup_tr128(LDW)
    for st in range(NS - 1):
        small_issue(st)
    E("s_lshl_b32 s26, s48, 1")
    E("s_sub_u32 s26, s26, 1")
    E("L_s1l_small_loop:")
    for s in range(NS):
        E(f"s_waitcnt vmcnt({(NS-2)*L})")
        E("s_barrier")
        if s == 1:
            E("s_cmp_lt_u32 s25, 1024")
            E("s_cbranch_scc1 L_s1l_same")
            E("s_add_u32 s50, s50, 1")
            small_srds()
            E("L_s1l_same:")
        small_issue((s + NS - 1) % NS)
    E("s_sub_u32 s26, s26, 1")
    E("s_cmp_lg_u32 s26, 0")
    E("s_cbranch_scc1 L_s1l_small_loop")
    E(f"s_waitcnt vmcnt({2*L})")
    E("s_barrier")
    small_issue(3)
    E(f"s_waitcnt vmcnt({2*L})")
    E("s_barrier")
    E(f"s_waitcnt vmcnt({L})")
    E("s_barrier")
    E("s_waitcnt vmcnt(0)")
    E("s_barrier")
    E("L_s1_done:")
    E("s_endpgm")


NST2 = 256


def gen_stage2():
    E(".p2align 8")
    E(".globl stage2_kernel")
    E(".type stage2_kernel,@function")
    E("stage2_kernel:")
    E(f"s_cmp_ge_u32 s2, {NST2}")
    E("s_cbranch_scc1 L_s2_done")
    E("s_load_dwordx2 s[4:5], s[0:1], 88")
    E("s_load_dwordx2 s[6:7], s[0:1], 0")
    E("s_load_dwordx2 s[32:33], s[0:1], 72")
    wave_ids()
    E("s_and_b32 s40, s2, 7")
    E("s_lshr_b32 s41, s2, 6")
    E("s_lshl_b32 s41, s41, 3")
    E("s_add_u32 s40, s40, s41")
    E("s_lshr_b32 s41, s2, 3")
    E("s_and_b32 s41, s41, 7")
    E("s_waitcnt lgkmcnt(0)")
    g = Gemm(1, 1, 2, "nt")
    NSTEP = KZ // 128
    PD = 3
    E("s_cmp_ge_u32 s3, 4")
    E("s_cbranch_scc1 L_s2_loader")
    E("s_lshr_b32 s34, s3, 1")
    E("s_and_b32 s35, s3, 1")
    E("s_lshl_b32 s36, s34, 5")
    E("s_lshl_b32 s37, s35, 5")
    srd(20, "s6", "s7", XN_SZ)
    srd(16, "s32", "s33", XN_SZ)
    E("s_lshl_b32 s45, s40, 6")
    E("s_add_u32 s45, s45, s37")
    E("s_lshl_b32 s45, s45, 10")
    E("s_lshl_b32 s44, s41, 6")
    E("s_add_u32 s44, s44, s36")
    E("s_lshl_b32 s44, s44, 1")
    E("s_add_u32 s45, s45, s44")
    E("s_add_u32 s46, s45, 16384")
    E("v_lshrrev_b32 v2, 2, v1")
    E("v_lshlrev_b32 v2, 10, v2")
    E("v_and_b32 v3, 3, v1")
    E("v_lshlrev_b32 v3, 4, v3")
    E("v_add_u32 v9, v2, v3")
    E(f"buffer_load_dwordx4 v[{ET}:{ET+3}], v9, s[20:23], s45 offen")
    E(f"buffer_load_dwordx4 v[{ET+4}:{ET+7}], v9, s[20:23], s46 offen")
    frag_setup_tr128("s34")
    E(f"v_mov_b32 v12, v{VA}")
    E(f"v_mov_b32 v13, v{VA+1}")
    frag_setup_nt(VA, "s36")
    frag_setup_nt(VB, "s37")
    E("s_lshl_b32 s49, s3, 13")
    E(f"s_add_u32 s49, s49, {STG_OFF}")
    g.zero_acc()

    cur_k = [0]

    def reads2(slot, sub, st):
        k = cur_k[0] if slot == cur_k[0] % NS else cur_k[0] + 1
        p, j = sub // 4, sub % 4
        half = slot // 2
        base = (slot % 2) * STAGE
        r = VF + st * g.fsz
        if k < 8:
            E(f"ds_read_b128 v[{r}:{r+3}], v{VA+half*4+j} offset:{base + p*8192}")
            E(f"ds_read_b128 v[{r}:{r+3}], v{VA+half*4+j} offset:{base + p*8192}") if False else None
        else:
            for q in range(2):
                E(f"ds_read_b64_tr_b16 v[{r+2*q}:{r+2*q+1}], v{12+half} offset:{base + p*8192 + j*2048 + q*512}")
        E(f"ds_read_b128 v[{r+4}:{r+7}], v{VB+half*4+j} offset:{base + 16384 + p*8192}")
    g.reads = reads2
    g.nr = 3
    E("s_barrier")
    for u in range(PD):
        g.reads(0, u, u)
    for k in range(NSTEP):
        cur_k[0] = k
        g.nr = 2 if k < 8 else 3
        g.cons_step(k % NS, PD, "always" if k < NSTEP - 1 else None)
    E("s_nop 15")
    E("v_and_b32 v2, 31, v1")
    E("v_lshrrev_b32 v3, 1, v2")
    E("v_and_b32 v3, 7, v3")
    E("v_lshrrev_b32 v4, 5, v1")
    E("v_xor_b32 v3, v3, v4")
    E("v_lshlrev_b32 v3, 4, v3")
    E("v_lshlrev_b32 v2, 7, v2")
    E("v_add_u32 v2, v2, v3")
    E("v_add_u32 v2, s49, v2")
    for gg in range(4):
        E(f"v_xor_b32 v4, {gg<<5}, v2")
        E(f"ds_write_b128 v4, v[{ACC+4*gg}:{ACC+4*gg+3}]")
    E("v_lshrrev_b32 v2, 2, v1")
    E("v_and_b32 v3, 3, v1")
    E("v_lshlrev_b32 v3, 1, v3")
    E("v_lshrrev_b32 v4, 3, v1")
    E("v_xor_b32 v3, v3, v4")
    E("v_lshlrev_b32 v3, 4, v3")
    E("v_lshlrev_b32 v2, 7, v2")
    E("v_add_u32 v2, v2, v3")
    E("v_add_u32 v2, s49, v2")
    E("v_xor_b32 v3, 16, v2")
    E("s_waitcnt lgkmcnt(0)")
    R = ET + 8
    for i in range(2):
        E(f"ds_read_b128 v[{R+8*i}:{R+8*i+3}], v2 offset:{i*2048}")
        E(f"ds_read_b128 v[{R+8*i+4}:{R+8*i+7}], v3 offset:{i*2048}")
    E("s_waitcnt vmcnt(0) lgkmcnt(0)")
    for i in range(2):
        for j in range(4):
            x = ET + 4 * i + j
            E(f"v_lshlrev_b32 v4, 16, v{x}")
            E(f"v_and_b32 v5, 0xffff0000, v{x}")
            E(f"v_add_f32 v4, v4, v{R+8*i+2*j}")
            E(f"v_add_f32 v5, v5, v{R+8*i+2*j+1}")
            E(f"v_cvt_pk_bf16_f32 v{x}, v4, v5")
        E(f"buffer_store_dwordx4 v[{ET+4*i}:{ET+4*i+3}], v9, s[16:19], {'s45' if i == 0 else 's46'} offen")
    rt_end(1)
    E("s_endpgm")
    E("L_s2_loader:")
    E("s_load_dwordx2 s[52:53], s[0:1], 24")
    E("s_load_dwordx2 s[54:55], s[0:1], 32")
    E("s_load_dwordx2 s[56:57], s[0:1], 64")
    E("s_sub_u32 s3, s3, 4")
    E("s_lshr_b32 s34, s3, 1")
    E("s_and_b32 s35, s3, 1")
    E("s_lshl_b32 s28, s3, 13")
    E("s_waitcnt lgkmcnt(0)")
    L = 8
    grp = [("s[8:11]", "s24", "s28", 0, VOFF), ("s[8:11]", "s25", "s28", 4096, VOFF)]

    def loop(issue):
        for st in range(NS - 1):
            issue(st)
        for k in range(NSTEP):
            vm = (min(k + NS - 2, NSTEP - 1) - k) * L
            E(f"s_waitcnt vmcnt({vm})")
            E("s_barrier")
            if k + NS - 1 < NSTEP:
                issue(k + NS - 1)
        E("s_endpgm")

    E("s_cmp_eq_u32 s34, 1")
    E("s_cbranch_scc1 L_s2l_z")

    def a_issue(stage):
        if stage in (0, 4):
            p = 52 + stage // 2
            E("s_lshl_b32 s42, s41, 16")
            add64(38, f"s{p}", f"s{p+1}", "s42")
            E(f"s_sub_u32 s46, {D_*D_*2}, s42")
            srd(8, "s38", "s39", "s46")
            E("s_lshl_b32 s24, s35, 7")
            E("s_add_u32 s25, s24, 32768")
            if stage == 0:
                dma_setup_nt(1024)
        if stage == 8:
            E("s_lshl_b32 s42, s41, 7")
            E("s_lshl_b32 s43, s35, 16")
            E("s_add_u32 s42, s42, s43")
            add64(38, "s56", "s57", "s42")
            E(f"s_sub_u32 s46, {F_*D_*2}, s42")
            srd(8, "s38", "s39", "s46")
            E("s_mov_b32 s24, 0")
            E("s_mov_b32 s25, 32768")
            dma_setup_tr128(1024)
            for i in range(4):
                E(f"v_mov_b32 v{VOFF+i}, v{VOFA+i}")
        g.dma(stage % NS, grp)
        adv = 256 if stage < 8 else 131072
        E(f"s_add_u32 s24, s24, {adv}")
        E(f"s_add_u32 s25, s25, {adv}")

    loop(a_issue)
    E("L_s2l_z:")
    E(f"s_mul_i32 s43, s40, {64*LDZ}")
    E(f"s_add_u32 s42, s43, {Z_OFF}")
    E(f"s_sub_u32 s46, {Z_SZ}, s43")
    add64(38, "s4", "s5", "s42")
    srd(8, "s38", "s39", "s46")
    E("s_lshl_b32 s24, s35, 7")
    E(f"s_add_u32 s25, s24, {32*LDZ}")
    dma_setup_nt(LDZ)

    def b_issue(stage):
        g.dma(stage % NS, grp)
        E("s_add_u32 s24, s24, 256")
        E("s_add_u32 s25, s25, 256")

    loop(b_issue)
    E("L_s2_done:")
    E("s_endpgm")


def desc(name, vgpr, sgpr):
    E(".p2align 6")
    E(f".amdhsa_kernel {name}")
    E(f"  .amdhsa_next_free_vgpr {vgpr}")
    E(f"  .amdhsa_next_free_sgpr {sgpr}")
    E(f"  .amdhsa_accum_offset {(vgpr+3)//4*4}")
    E("  .amdhsa_group_segment_fixed_size 0")
    E("  .amdhsa_kernarg_size 96")
    E("  .amdhsa_user_sgpr_count 2")
    E("  .amdhsa_user_sgpr_kernarg_segment_ptr 1")
    E("  .amdhsa_system_sgpr_workgroup_id_x 1")
    E("  .amdhsa_float_denorm_mode_32 3")
    E(".end_amdhsa_kernel")


def main():
    hdr = open(f"cdna_kernels/{NAME}.s.ref").read().split("\n")
    for line in hdr:
        if line.startswith(";") and "@launch" not in line and "Override launch" not in line and "grid=ceil" not in line:
            E(line)
        elif not line.startswith(";"):
            break
    E(f"; @launch kernel=prep_kernel grid=({NPREP},1,1) block=(256,1,1) lds=16384")
    E(f"; @launch kernel=stage1_kernel grid=({NST1},1,1) block=(512,1,1) lds={NS*STAGE+32768}")
    E(f"; @launch kernel=stage2_kernel grid=({NST2},1,1) block=(512,1,1) lds={NS*STAGE+32768}")
    E('.amdgcn_target "amdgcn-amd-amdhsa--gfx950"')
    E(".text")
    gen_prep()
    gen_stage1()
    gen_stage2()
    E('.section .rodata,"a"')
    desc("prep_kernel", 80, 100)
    desc("stage1_kernel", 200, 100)
    desc("stage2_kernel", 200, 100)
    open(os.environ.get("OUT", f"cdna_kernels/{NAME}.s"), "w").write("\n".join(out) + "\n")


if __name__ == "__main__":
    main()
```

```python
import struct, os

EXP = os.environ.get("EXP", "")
NAME = "parallel_sum__spectral_fnet__geglu_ffn__prompt"
S_, D_, F_ = 2048, 512, 1376
FP = 1408
KZ = 2432
LDZ = KZ * 2
LDW = F_ * 2
XN_OFF = 0x000000
V_OFF = 0x200000
Z_OFF = 0x500000
XN_SZ = S_ * D_ * 2
V_SZ = D_ * LDZ
Z_SZ = S_ * LDZ

out = []


def E(s=""):
    out.append(s)


def f32(x):
    return "0x%08x" % struct.unpack("<I", struct.pack("<f", x))[0]


def srd(reg, lo, hi, size):
    E(f"s_mov_b32 s{reg}, {lo}")
    E(f"s_and_b32 s{reg+1}, {hi}, 0xffff")
    E(f"s_mov_b32 s{reg+2}, {size}")
    E(f"s_mov_b32 s{reg+3}, 0x00020000")


def add64(dlo, slo, shi, off):
    E(f"s_add_u32 s{dlo}, {slo}, {off}")
    E(f"s_addc_u32 s{dlo+1}, {shi}, 0")


NRT = [0]


def dstamp(kidx, slot, cond_wg=0):
    if "dst" not in EXP:
        return
    lab = f"L_ds{NRT[0]}"
    NRT[0] += 1
    E(f"s_cmp_lg_u32 s2, {cond_wg}")
    E(f"s_cbranch_scc1 {lab}")
    E("v_readfirstlane_b32 s90, v0")
    E("s_nop 3")
    E("s_cmp_lg_u32 s90, 0")
    E(f"s_cbranch_scc1 {lab}")
    E("s_memrealtime s[94:95]")
    E("s_load_dwordx2 s[88:89], s[0:1], 80")
    E("s_waitcnt lgkmcnt(0)")
    E(f"s_sub_u32 s84, s88, {512*kidx}")
    E("s_subb_u32 s85, s89, 0")
    E("s_and_b32 s85, s85, 0xffff")
    E("s_mov_b32 s86, 256")
    E("s_mov_b32 s87, 0x00020000")
    E("v_mov_b32 v198, 0")
    E("v_mov_b32 v199, s94")
    E(f"buffer_store_dword v199, v198, s[84:87], 0 offen offset:{slot*4}")
    E("s_waitcnt vmcnt(0)")
    E(f"{lab}:")


def rt_begin():
    if "rt" not in EXP:
        return
    E("s_memrealtime s[92:93]")
    E("s_memtime s[96:97]")


def rt_end(slot):
    if "rt" not in EXP:
        return
    lab = f"L_rt{NRT[0]}"
    NRT[0] += 1
    E("s_waitcnt vmcnt(0) lgkmcnt(0)")
    E("s_memrealtime s[94:95]")
    E("s_memtime s[98:99]")
    E("s_cmp_lg_u32 s3, 0")
    E(f"s_cbranch_scc1 {lab}")
    E("s_load_dwordx2 s[60:61], s[0:1], 88")
    E("s_waitcnt lgkmcnt(0)")
    E(f"s_add_u32 s64, s60, {0x1E00000 + slot*0x10000}")
    E("s_addc_u32 s65, s61, 0")
    E("s_and_b32 s65, s65, 0xffff")
    E("s_mov_b32 s66, 0x10000")
    E("s_mov_b32 s67, 0x00020000")
    E("s_lshl_b32 s62, s2, 4")
    E("v_mov_b32 v2, s62")
    E("v_mov_b32 v4, s92")
    E("v_mov_b32 v5, s94")
    E("s_sub_u32 s62, s98, s96")
    E("v_mov_b32 v6, s62")
    E("v_mov_b32 v7, 0")
    E("buffer_store_dwordx4 v[4:7], v2, s[64:67], 0 offen")
    E(f"{lab}:")


def wave_ids():
    rt_begin()
    E("v_and_b32 v1, 63, v0")
    E("v_lshrrev_b32 v2, 6, v0")
    E("s_nop 0")
    E("v_readfirstlane_b32 s3, v2")
    E("s_nop 3")


N_LN = 256
N_TR = 88
N_CP = 16
N_PF = 44 if 'nopf' not in EXP else 0
NPREP = N_LN + N_TR + N_CP + N_PF


def gen_prep():
    E(".p2align 8")
    E(".globl prep_kernel")
    E(".type prep_kernel,@function")
    E("prep_kernel:")
    dstamp(0, 0)
    E(f"s_cmp_ge_u32 s2, {NPREP}")
    E("s_cbranch_scc1 L_prep_done")
    E("s_load_dwordx2 s[4:5], s[0:1], 88")
    wave_ids()
    E(f"s_cmp_lt_u32 s2, {N_LN}")
    E("s_cbranch_scc1 L_prep_ln")
    E(f"s_cmp_lt_u32 s2, {N_LN + N_TR}")
    E("s_cbranch_scc1 L_prep_tr")
    E(f"s_cmp_lt_u32 s2, {N_LN + N_TR + N_CP}")
    E("s_cbranch_scc1 L_prep_copy")
    E("s_load_dwordx2 s[6:7], s[0:1], 48")
    E("s_load_dwordx2 s[26:27], s[0:1], 56")
    E(f"s_sub_u32 s20, s2, {N_LN + N_TR + N_CP}")
    E("s_cmp_ge_u32 s20, 22")
    E("s_cselect_b32 s21, 22, 0")
    E("s_sub_u32 s20, s20, s21")
    E("s_waitcnt lgkmcnt(0)")
    E("s_cmp_eq_u32 s21, 22")
    E("s_cselect_b32 s6, s26, s6")
    E("s_cselect_b32 s7, s27, s7")
    srd(8, "s6", "s7", D_ * LDW)
    E("s_lshl_b32 s22, s20, 16")
    E("s_lshl_b32 s23, s3, 14")
    E("s_add_u32 s22, s22, s23")
    E("v_lshlrev_b32 v3, 4, v1")
    for i in range(16):
        E(f"buffer_load_dwordx4 v[{16+4*i}:{16+4*i+3}], v3, s[8:11], s22 offen offset:{(i%4)*1024}")
        if i % 4 == 3:
            E("s_add_u32 s22, s22, 4096")
    E("s_endpgm")

    NR = 2
    E("L_prep_ln:")
    E("s_load_dwordx2 s[6:7], s[0:1], 0")
    E("s_waitcnt lgkmcnt(0)")
    srd(8, "s6", "s7", XN_SZ)
    add64(24, "s4", "s5", XN_OFF)
    srd(12, "s24", "s25", XN_SZ)
    E("s_lshl_b32 s20, s2, 13")
    E("s_lshl_b32 s22, s3, 11")
    E("s_add_u32 s20, s20, s22")
    E("v_lshlrev_b32 v3, 4, v1")
    P0, X0, R0, M0r, T0, U0, W0 = 16, 32, 48, 52, 56, 60, 64
    for i in range(NR):
        E(f"buffer_load_dwordx4 v[{P0+4*i}:{P0+4*i+3}], v3, s[8:11], s20 offen offset:{i*1024}")
    for i in range(NR):
        E(f"s_waitcnt vmcnt({NR-1-i})")
        for j in range(4):
            E(f"v_lshlrev_b32 v{X0+8*i+2*j}, 16, v{P0+4*i+j}")
            E(f"v_and_b32 v{X0+8*i+2*j+1}, 0xffff0000, v{P0+4*i+j}")

    def wave_reduce(base):
        for ctl in ["row_shr:1 row_mask:0xf bank_mask:0xf bound_ctrl:0",
                    "row_shr:2 row_mask:0xf bank_mask:0xf bound_ctrl:0",
                    "row_shr:4 row_mask:0xf bank_mask:0xf bound_ctrl:0",
                    "row_shr:8 row_mask:0xf bank_mask:0xf bound_ctrl:0",
                    "row_bcast:15 row_mask:0xa bank_mask:0xf",
                    "row_bcast:31 row_mask:0xc bank_mask:0xf"]:
            E("s_nop 0")
            for i in range(NR):
                E(f"v_add_f32_dpp v{base+i}, v{base+i}, v{base+i} {ctl}")
        E("s_nop 0")
        for i in range(NR):
            E(f"v_readlane_b32 s{32+i}, v{base+i}, 63")
        E("s_nop 1")

    for i in range(NR):
        E(f"v_add_f32 v{R0+i}, v{X0+8*i}, v{X0+8*i+1}")
    for j in range(2, 8):
        for i in range(NR):
            E(f"v_add_f32 v{R0+i}, v{R0+i}, v{X0+8*i+j}")
    wave_reduce(R0)
    for i in range(NR):
        E(f"v_mov_b32 v{M0r+i}, s{32+i}")
    for i in range(NR):
        E(f"v_mul_f32 v{M0r+i}, {f32(1.0/512)}, v{M0r+i}")
    for j in range(8):
        for i in range(NR):
            E(f"v_sub_f32 v{T0+i}, v{X0+8*i+j}, v{M0r+i}")
        for i in range(NR):
            if j == 0:
                E(f"v_mul_f32 v{R0+i}, v{T0+i}, v{T0+i}")
            else:
                E(f"v_fmac_f32 v{R0+i}, v{T0+i}, v{T0+i}")
    wave_reduce(R0)
    for i in range(NR):
        E(f"v_mov_b32 v{T0+i}, s{32+i}")
    for i in range(NR):
        E(f"v_mul_f32 v{T0+i}, {f32(1.0/512)}, v{T0+i}")
    for i in range(NR):
        E(f"v_cvt_pk_bf16_f32 v{U0+i}, v{T0+i}, v{M0r+i}")
    for i in range(NR):
        E(f"v_lshlrev_b32 v{T0+i}, 16, v{U0+i}")
        E(f"v_and_b32 v{M0r+i}, 0xffff0000, v{U0+i}")
    for i in range(NR):
        E(f"v_add_f32 v{T0+i}, {f32(1e-5)}, v{T0+i}")
    for i in range(NR):
        E(f"v_cvt_pk_bf16_f32 v{U0+i}, v{T0+i}, v{T0+i}")
    for i in range(NR):
        E(f"v_lshlrev_b32 v{T0+i}, 16, v{U0+i}")
    for i in range(NR):
        E(f"v_sqrt_f32 v{T0+i}, v{T0+i}")
    E("s_nop 0")
    for i in range(NR):
        E(f"v_cvt_pk_bf16_f32 v{U0+i}, v{T0+i}, v{T0+i}")
    for i in range(NR):
        E(f"v_lshlrev_b32 v{T0+i}, 16, v{U0+i}")
    for i in range(NR):
        E(f"v_rcp_f32 v{W0+i}, v{T0+i}")
    E("s_nop 0")
    for i in range(NR):
        for j in range(0, 8, 2):
            a_, b_ = X0 + 8 * i + j, X0 + 8 * i + j + 1
            E(f"v_sub_f32 v{a_}, v{a_}, v{M0r+i}")
            E(f"v_sub_f32 v{b_}, v{b_}, v{M0r+i}")
            E(f"v_cvt_pk_bf16_f32 v4, v{a_}, v{b_}")
            E(f"v_lshlrev_b32 v{a_}, 16, v4")
            E(f"v_and_b32 v{b_}, 0xffff0000, v4")
            E(f"v_mul_f32 v5, v{a_}, v{W0+i}")
            E(f"v_mul_f32 v6, v{b_}, v{W0+i}")
            E(f"v_fma_f32 v7, -v5, v{T0+i}, v{a_}")
            E(f"v_fma_f32 v8, -v6, v{T0+i}, v{b_}")
            E(f"v_fma_f32 v5, v7, v{W0+i}, v5")
            E(f"v_fma_f32 v6, v8, v{W0+i}, v6")
            E(f"v_cvt_pk_bf16_f32 v{P0+4*i+j//2}, v5, v6")
    for i in range(NR):
        E(f"buffer_store_dwordx4 v[{P0+4*i}:{P0+4*i+3}], v3, s[12:15], s20 offen offset:{i*1024}")
    E("s_waitcnt vmcnt(0)")
    dstamp(0, 1)
    E("s_endpgm")

    E("L_prep_tr:")
    E("s_load_dwordx2 s[28:29], s[0:1], 64")
    E(f"s_sub_u32 s20, s2, {N_LN}")
    E("s_waitcnt lgkmcnt(0)")
    E("s_lshr_b32 s22, s20, 2")
    E("s_and_b32 s23, s20, 3")
    srd(8, "s28", "s29", F_ * D_ * 2)
    add64(24, "s4", "s5", V_OFF)
    srd(12, "s24", "s25", V_SZ)
    E("v_lshrrev_b32 v3, 4, v1")
    E("v_and_b32 v4, 15, v1")
    E("v_lshlrev_b32 v5, 10, v3")
    E("v_lshlrev_b32 v6, 4, v4")
    E("v_add_u32 v5, v5, v6")
    E("s_lshl_b32 s24, s22, 6")
    E("s_lshl_b32 s25, s3, 4")
    E("s_add_u32 s24, s24, s25")
    E("s_lshl_b32 s24, s24, 10")
    E("s_lshl_b32 s25, s23, 8")
    E("s_add_u32 s24, s24, s25")
    E("v_and_b32 v8, 127, v0")
    E("s_lshl_b32 s31, s23, 7")
    E("v_add_u32 v8, s31, v8")
    E(f"s_movk_i32 s25, {LDZ}")
    E("v_mul_lo_u32 v8, v8, s25")
    E("s_lshl_b32 s31, s22, 7")
    E("s_add_u32 s31, s31, 2048")
    for i in range(4):
        E(f"buffer_load_dwordx4 v[{16+4*i}:{16+4*i+3}], v5, s[8:11], s24 offen")
        E("s_add_u32 s24, s24, 4096")
    E("v_lshlrev_b32 v9, 12, v2")
    E("v_lshlrev_b32 v10, 4, v1")
    E("v_add_u32 v9, v9, v10")
    E("v_lshrrev_b32 v10, 7, v0")
    E("v_lshlrev_b32 v11, 6, v10")
    E("v_add_u32 v8, v8, v11")
    E("v_lshlrev_b32 v10, 13, v10")
    E("v_and_b32 v11, 127, v0")
    E("v_lshlrev_b32 v11, 1, v11")
    E("v_add_u32 v10, v10, v11")
    for i in range(4):
        E(f"s_waitcnt vmcnt({3-i})")
        E(f"ds_write_b128 v9, v[{16+4*i}:{16+4*i+3}] offset:{i*1024}")
    E("s_waitcnt lgkmcnt(0)")
    E("s_barrier")
    for j in range(32):
        E(f"ds_read_u16 v{32+j}, v10 offset:{j*256}")
    for i in range(16):
        if i % 4 == 0:
            E(f"s_waitcnt lgkmcnt({min(15, 24 - 2*i)})")
        E(f"v_lshl_or_b32 v{32+i}, v{32+2*i+1}, 16, v{32+2*i}")
        if i % 4 == 3:
            E(f"buffer_store_dwordx4 v[{32+i-3}:{32+i}], v8, s[12:15], s31 offen offset:{(i//4)*16}")
    E("s_endpgm")

    E("L_prep_copy:")
    E("s_load_dwordx2 s[6:7], s[0:1], 24")
    E("s_load_dwordx2 s[26:27], s[0:1], 32")
    E(f"s_sub_u32 s20, s2, {N_LN + N_TR}")
    E("s_lshr_b32 s21, s20, 3")
    E("s_and_b32 s20, s20, 7")
    E("s_waitcnt lgkmcnt(0)")
    E("s_cmp_eq_u32 s21, 1")
    E("s_cselect_b32 s6, s26, s6")
    E("s_cselect_b32 s7, s27, s7")
    E("s_cselect_b32 s28, 0x80008000, 0")
    srd(8, "s6", "s7", D_ * D_ * 2)
    add64(24, "s4", "s5", V_OFF)
    srd(12, "s24", "s25", V_SZ)
    E("s_lshl_b32 s22, s20, 6")
    E("s_add_u32 s22, s22, s3")
    E("s_lshl_b32 s23, s22, 10")
    E(f"s_mul_i32 s24, s22, {LDZ}")
    E("s_lshl_b32 s25, s21, 10")
    E("s_add_u32 s24, s24, s25")
    E("v_lshlrev_b32 v3, 4, v1")
    for i in range(16):
        E(f"buffer_load_dwordx4 v[{16+4*i}:{16+4*i+3}], v3, s[8:11], s23 offen")
        E("s_add_u32 s23, s23, 4096")
    for i in range(16):
        E("s_waitcnt vmcnt(15)")
        for j in range(4):
            E(f"v_xor_b32 v{16+4*i+j}, s28, v{16+4*i+j}")
        E(f"buffer_store_dwordx4 v[{16+4*i}:{16+4*i+3}], v3, s[12:15], s24 offen")
        E(f"s_add_u32 s24, s24, {4*LDZ}")
    E("L_prep_done:")
    E("s_endpgm")


STAGE = 32768
NS = 4
STG_OFF = NS * STAGE
VOFF = 10
VOFA = 16
VA = 16
VB = 24
VF = 32
ACC = 96
ET = 160


def dma_setup_nt(ld):
    E("v_lshrrev_b32 v2, 3, v1")
    E("v_lshrrev_b32 v3, 4, v1")
    E("v_and_b32 v4, 7, v1")
    E(f"s_movk_i32 s29, {ld}")
    for i in range(4):
        E(f"v_add_u32 v5, {8*i}, v2")
        E("v_mul_lo_u32 v5, v5, s29")
        E(f"v_add_u32 v6, {4*i}, v3")
        E("v_and_b32 v6, 7, v6")
        E("v_xor_b32 v6, v6, v4")
        E("v_lshlrev_b32 v6, 4, v6")
        E("v_add_u32 v5, v5, v6")
        if i:
            E(f"v_subrev_u32 v5, {i*1024}, v5")
        E(f"v_mov_b32 v{VOFF+i}, v5")


def dma_setup_tr256(ld):
    E("v_lshrrev_b32 v2, 4, v1")
    E("v_and_b32 v3, 15, v1")
    E("v_lshlrev_b32 v4, 2, v2")
    E("v_xor_b32 v3, v3, v4")
    E("v_lshlrev_b32 v3, 4, v3")
    E(f"s_movk_i32 s29, {ld}")
    for i in range(4):
        E(f"v_add_u32 v5, {4*i}, v2")
        E("v_mul_lo_u32 v5, v5, s29")
        E("v_add_u32 v5, v5, v3")
        if i:
            E(f"v_subrev_u32 v5, {i*1024}, v5")
        E(f"v_mov_b32 v{VOFA+i}, v5")


def dma_setup_tr128(ld):
    E("v_lshrrev_b32 v2, 3, v1")
    E("v_and_b32 v3, 7, v1")
    E("v_lshrrev_b32 v4, 4, v1")
    E("v_and_b32 v4, 1, v4")
    E("v_lshlrev_b32 v4, 2, v4")
    E("v_xor_b32 v3, v3, v4")
    E("v_lshlrev_b32 v3, 4, v3")
    E(f"s_movk_i32 s29, {ld}")
    for i in range(4):
        E(f"v_add_u32 v5, {8*i}, v2")
        E("v_mul_lo_u32 v5, v5, s29")
        E("v_add_u32 v5, v5, v3")
        if i:
            E(f"v_subrev_u32 v5, {i*1024}, v5")
        E(f"v_mov_b32 v{VOFA+i}, v5")


def frag_setup_nt(base_reg, wrow):
    E("v_and_b32 v2, 31, v1")
    E("v_lshrrev_b32 v3, 5, v1")
    E("v_lshrrev_b32 v4, 1, v2")
    E("v_and_b32 v4, 7, v4")
    E("v_xor_b32 v4, v4, v3")
    E("v_lshlrev_b32 v4, 4, v4")
    E("v_lshlrev_b32 v5, 7, v2")
    E("v_add_u32 v4, v4, v5")
    E(f"s_lshl_b32 s30, {wrow}, 7")
    for j in range(4):
        E(f"v_xor_b32 v5, {j*32}, v4")
        E(f"v_add_u32 v{base_reg+j}, s30, v5")
        E(f"v_add_u32 v{base_reg+4+j}, 0x10000, v{base_reg+j}")


def frag_setup_tr256(wm):
    E("v_and_b32 v2, 15, v1")
    E("v_lshrrev_b32 v2, 2, v2")
    E("v_lshrrev_b32 v3, 5, v1")
    E("v_lshlrev_b32 v3, 3, v3")
    E("v_add_u32 v3, v3, v2")
    E("v_lshlrev_b32 v3, 8, v3")
    E("v_lshrrev_b32 v4, 4, v1")
    E("v_and_b32 v4, 1, v4")
    E("v_lshlrev_b32 v4, 1, v4")
    E("v_and_b32 v5, 3, v1")
    E("v_lshrrev_b32 v5, 1, v5")
    E("v_add_u32 v4, v4, v5")
    E(f"s_lshl_b32 s30, {wm}, 3")
    E("v_add_u32 v4, s30, v4")
    E("v_lshlrev_b32 v5, 2, v2")
    E("v_xor_b32 v4, v4, v5")
    E("v_lshlrev_b32 v4, 4, v4")
    E("v_add_u32 v3, v3, v4")
    E("v_and_b32 v4, 1, v1")
    E("v_lshlrev_b32 v4, 3, v4")
    E(f"v_add_u32 v{VA}, v3, v4")
    E(f"v_xor_b32 v{VA+1}, 64, v{VA}")
    E(f"v_add_u32 v{VA+2}, 0x10000, v{VA}")
    E(f"v_add_u32 v{VA+3}, 0x10000, v{VA+1}")


def frag_setup_tr128(wm):
    E("v_and_b32 v2, 15, v1")
    E("v_lshrrev_b32 v2, 2, v2")
    E("v_lshrrev_b32 v3, 5, v1")
    E("v_lshlrev_b32 v3, 3, v3")
    E("v_add_u32 v3, v3, v2")
    E("v_lshlrev_b32 v3, 7, v3")
    E("v_lshrrev_b32 v4, 4, v1")
    E("v_and_b32 v4, 1, v4")
    E("v_lshlrev_b32 v4, 1, v4")
    E("v_and_b32 v5, 3, v1")
    E("v_lshrrev_b32 v5, 1, v5")
    E("v_add_u32 v4, v4, v5")
    E(f"s_lshl_b32 s30, {wm}, 2")
    E("v_add_u32 v4, s30, v4")
    E("v_lshrrev_b32 v5, 3, v1")
    E("v_and_b32 v5, 1, v5")
    E("v_lshlrev_b32 v5, 2, v5")
    E("v_xor_b32 v4, v4, v5")
    E("v_lshlrev_b32 v4, 4, v4")
    E("v_add_u32 v3, v3, v4")
    E("v_and_b32 v4, 1, v1")
    E("v_lshlrev_b32 v4, 3, v4")
    E(f"v_add_u32 v{VA}, v3, v4")
    E(f"v_add_u32 v{VA+1}, 0x10000, v{VA}")


class Gemm:
    def __init__(self, BM, BN, KP, amode):
        self.BM, self.BN, self.KP, self.amode = BM, BN, KP, amode
        self.nsub = 4 * KP
        self.fsz = (BM + BN) * 4
        self.panel = 16384 // KP
        self.nr = BN + (BM if amode == "nt" else 2 * BM)

    def dma(self, slot, groups):
        for (sr, so, mb, mi, vo) in groups:
            E(f"s_add_u32 m0, {mb}, {slot*STAGE + mi}")
            E("s_nop 0")
            for i in range(4):
                E(f"buffer_load_dwordx4 v{vo+i}, {sr}, {so} offen offset:{i*1024} lds")

    def reads(self, slot, sub, st):
        p, j = sub // 4, sub % 4
        half = slot // 2
        base = (slot % 2) * STAGE
        for bm in range(self.BM):
            r = VF + st * self.fsz + bm * 4
            if self.amode == "nt":
                E(f"ds_read_b128 v[{r}:{r+3}], v{VA+half*4+j} offset:{base + p*self.panel + bm*4096}")
            elif self.amode == "tr256":
                for q in range(2):
                    E(f"ds_read_b64_tr_b16 v[{r+2*q}:{r+2*q+1}], v{VA+half*2+bm} offset:{base + j*4096 + q*1024}")
            else:
                for q in range(2):
                    E(f"ds_read_b64_tr_b16 v[{r+2*q}:{r+2*q+1}], v{VA+half} offset:{base + bm*8192 + j*2048 + q*512}")
        for bn in range(self.BN):
            r = VF + st * self.fsz + self.BM * 4 + bn * 4
            E(f"ds_read_b128 v[{r}:{r+3}], v{VB+half*4+j} offset:{base + 16384 + p*self.panel + bn*4096}")

    def mfmas(self, st):
        for bm in range(self.BM):
            for bn in range(self.BN):
                a = VF + st * self.fsz + bm * 4
                b = VF + st * self.fsz + self.BM * 4 + bn * 4
                c = ACC + (bm * self.BN + bn) * 16
                E(f"v_mfma_f32_32x32x16_bf16 v[{c}:{c+15}], v[{a}:{a+3}], v[{b}:{b+3}], v[{c}:{c+15}]")

    def zero_acc(self):
        for r in range(ACC, ACC + self.BM * self.BN * 16):
            E(f"v_mov_b32 v{r}, 0")

    def cons_step(self, slot, PD, nxt):
        n = self.nsub
        nslot = (slot + 1) % NS
        for u in range(n):
            st = u % 4
            t = u + PD
            if t < n:
                self.reads(slot, t, t % 4)
                E(f"s_waitcnt lgkmcnt({PD*self.nr})")
            else:
                if t == n:
                    E("s_waitcnt lgkmcnt(0)")
                    if nxt == "always":
                        E("s_barrier")
                    elif nxt is not None:
                        E("s_cmp_eq_u32 s27, 0")
                        E(f"s_cbranch_scc1 {nxt}_a")
                        E("s_barrier")
                if nxt is not None:
                    self.reads(nslot, t - n, t % 4)
                    if nxt != "always":
                        E(f"{nxt}_{'a' if t == n else 'b%d' % t}:")
            self.mfmas(st)
            if t >= n and t + 1 < n + PD and nxt not in (None, "always"):
                E("s_cmp_eq_u32 s27, 0")
                E(f"s_cbranch_scc1 {nxt}_b{t+1}")


NBIG = 128
NST1 = 256


def s1_big_tile():
    E("s_and_b32 s40, s2, 7")
    E("s_lshr_b32 s41, s2, 5")
    E("s_lshl_b32 s41, s41, 3")
    E("s_add_u32 s40, s40, s41")
    E("s_lshr_b32 s41, s2, 3")
    E("s_and_b32 s41, s41, 3")


def s1_small_tile(ti):
    E(f"s_sub_u32 s42, s2, {NBIG}")
    E("s_and_b32 s43, s42, 7")
    E("s_lshr_b32 s42, s42, 3")
    E(f"s_lshl_b32 s44, {ti}, 4")
    E("s_add_u32 s42, s42, s44")
    E("s_lshr_b32 s40, s42, 1")
    E("s_and_b32 s42, s42, 1")
    E("s_lshl_b32 s41, s43, 1")
    E("s_add_u32 s41, s41, s42")


def korder():
    if "korder0" in EXP:
        return [(dq, j) for dq in range(4) for j in range(8)]
    seq = [(0, 0), (0, 1)]
    for j in range(6):
        seq += [(1, j), (0, j + 2)]
    seq += [(1, 6), (1, 7)]
    seq += [(dq, j) for dq in (2, 3) for j in range(8)]
    return seq


def gen_stage1():
    E(".p2align 8")
    E(".globl stage1_kernel")
    E(".type stage1_kernel,@function")
    E("stage1_kernel:")
    dstamp(1, 2)
    dstamp(1, 8, 128)
    E(f"s_cmp_ge_u32 s2, {NST1}")
    E("s_cbranch_scc1 L_s1_done")
    E("s_load_dwordx2 s[4:5], s[0:1], 88")
    E("s_load_dwordx2 s[6:7], s[0:1], 8")
    E("s_load_dwordx2 s[32:33], s[0:1], 16")
    E("s_load_dwordx2 s[56:57], s[0:1], 48")
    E("s_load_dwordx2 s[58:59], s[0:1], 56")
    wave_ids()
    E(f"s_sub_u32 s48, s2, {NBIG}")
    E("s_lshr_b32 s48, s48, 3")
    E("s_cmp_lt_u32 s48, 12")
    E("s_cselect_b32 s48, 3, 2")
    E("s_waitcnt lgkmcnt(0)")
    E("s_cmp_ge_u32 s3, 4")
    E("s_cbranch_scc1 L_s1_loader")

    gb = Gemm(2, 2, 1, "tr256")
    gs = Gemm(2, 2, 1, "tr128")
    PD = 2
    E("s_lshr_b32 s34, s3, 1")
    E("s_and_b32 s35, s3, 1")
    E("s_lshl_b32 s36, s34, 6")
    E("s_lshl_b32 s37, s35, 6")
    add64(38, "s4", "s5", Z_OFF)
    srd(16, "s38", "s39", Z_SZ)
    frag_setup_nt(VB, "s37")
    E("s_lshl_b32 s49, s3, 13")
    E(f"s_add_u32 s49, s49, {STG_OFF}")
    E(f"s_cmp_ge_u32 s2, {NBIG}")
    E("s_cbranch_scc1 L_s1c_small")

    frag_setup_tr256("s34")
    gb.zero_acc()
    E("s_barrier")
    for u in range(PD):
        gb.reads(0, u, u)
    E("s_mov_b32 s27, 7")
    E("L_s1c_big_loop:")
    for s in range(NS):
        gb.cons_step(s, PD, "always" if s < NS - 1 else "L_s1cb")
    E("s_sub_u32 s27, s27, 1")
    E("s_cmp_ge_i32 s27, 0")
    E("s_cbranch_scc1 L_s1c_big_loop")
    E("s_nop 15")
    s1_big_tile()
    E("s_cmp_ge_u32 s40, 16")
    E("s_cselect_b32 s44, 512, 0")
    E("s_and_b32 s45, s40, 15")
    E("s_lshl_b32 s45, s45, 7")
    E("s_add_u32 s45, s45, s37")
    E(f"s_mul_i32 s45, s45, {LDZ}")
    E("s_lshl_b32 s41, s41, 7")
    E("s_add_u32 s44, s44, s41")
    E("s_add_u32 s44, s44, s36")
    E("s_lshl_b32 s44, s44, 1")
    E("s_add_u32 s45, s45, s44")
    E("v_and_b32 v2, 31, v1")
    E("v_lshrrev_b32 v3, 1, v2")
    E("v_and_b32 v3, 7, v3")
    E("v_lshlrev_b32 v3, 4, v3")
    E("v_lshlrev_b32 v2, 7, v2")
    E("v_add_u32 v2, v2, v3")
    E("v_lshrrev_b32 v3, 5, v1")
    E("v_lshlrev_b32 v3, 3, v3")
    E("v_add_u32 v2, v2, v3")
    E("v_add_u32 v2, s49, v2")
    n = 0
    for bm in range(2):
        for gg in range(4):
            ch = bm * 4 + gg
            E(f"v_xor_b32 v4, {ch<<4}, v2")
            for bn in range(2):
                c = ACC + (bm * 2 + bn) * 16
                t = ET + (n % 8) * 2
                n += 1
                E(f"v_cvt_pk_bf16_f32 v{t}, v{c+4*gg}, v{c+4*gg+1}")
                E(f"v_cvt_pk_bf16_f32 v{t+1}, v{c+4*gg+2}, v{c+4*gg+3}")
                E(f"ds_write_b64 v4, v[{t}:{t+1}] offset:{bn*4096}")
    E("v_lshrrev_b32 v2, 3, v1")
    E("v_and_b32 v3, 7, v1")
    E("v_lshrrev_b32 v4, 4, v1")
    E("v_xor_b32 v4, v4, v3")
    E("v_lshlrev_b32 v4, 4, v4")
    E("v_lshlrev_b32 v5, 7, v2")
    E("v_add_u32 v4, v4, v5")
    E("v_add_u32 v4, s49, v4")
    E("v_xor_b32 v5, 64, v4")
    E(f"s_movk_i32 s29, {LDZ}")
    E("v_mul_lo_u32 v6, v2, s29")
    E("v_lshlrev_b32 v3, 4, v3")
    E("v_add_u32 v6, v6, v3")
    E("s_waitcnt lgkmcnt(0)")
    for i in range(8):
        E(f"ds_read_b128 v[{ET+4*i}:{ET+4*i+3}], v{4 + (i&1)} offset:{i*1024}")
    for i in range(8):
        E(f"s_waitcnt lgkmcnt({7-i})")
        E(f"buffer_store_dwordx4 v[{ET+4*i}:{ET+4*i+3}], v6, s[16:19], s45 offen")
        E(f"s_add_u32 s45, s45, {8*LDZ}")
    E("s_waitcnt vmcnt(0)")
    dstamp(1, 3)
    rt_end(0)
    E("s_endpgm")

    E("L_s1c_small:")
    frag_setup_tr128("s34")
    CK = -2.0 * 0.7978845608028654 * 1.4426950408889634
    E(f"s_mov_b32 s46, {f32(0.044715*CK)}")
    E(f"s_mov_b32 s47, {f32(0.044715*CK)}")
    E(f"v_mov_b32 v14, {f32(CK)}")
    E(f"v_mov_b32 v15, {f32(CK)}")
    E("s_mov_b32 s54, 1.0")
    E("s_mov_b32 s55, 1.0")
    E("s_mov_b32 s50, 0")
    E("s_lshl_b32 s27, s48, 1")
    E("s_sub_u32 s27, s27, 1")
    E("v_and_b32 v2, 31, v1")
    E("v_lshrrev_b32 v3, 2, v2")
    E("v_and_b32 v3, 3, v3")
    E("v_lshlrev_b32 v3, 4, v3")
    E("v_lshlrev_b32 v2, 6, v2")
    E("v_add_u32 v2, v2, v3")
    E("v_lshrrev_b32 v3, 5, v1")
    E("v_lshlrev_b32 v3, 3, v3")
    E("v_add_u32 v2, v2, v3")
    E("v_add_u32 v7, s49, v2")
    E("v_lshrrev_b32 v2, 2, v1")
    E("v_and_b32 v3, 3, v1")
    E("v_lshrrev_b32 v4, 4, v1")
    E("v_and_b32 v4, 3, v4")
    E("v_xor_b32 v4, v4, v3")
    E("v_lshlrev_b32 v4, 4, v4")
    E("v_lshlrev_b32 v5, 6, v2")
    E("v_add_u32 v4, v4, v5")
    E("v_add_u32 v8, s49, v4")
    E(f"s_movk_i32 s29, {LDZ}")
    E("v_mul_lo_u32 v9, v2, s29")
    E("v_lshlrev_b32 v3, 4, v3")
    E("v_add_u32 v9, v9, v3")
    E("s_barrier")
    for u in range(PD):
        gs.reads(0, u, u)
    E("L_s1c_tile:")
    gs.zero_acc()
    for rep in range(2):
        for s in range(NS):
            gs.cons_step(s, PD, "always" if s < NS - 1 else f"L_s1cs{rep}")
        E("s_sub_u32 s27, s27, 1")
    E("s_nop 15")
    s1_small_tile("s50")
    E("s_lshl_b32 s45, s41, 7")
    E("s_add_u32 s45, s45, s37")
    E(f"s_mul_i32 s45, s45, {LDZ}")
    E("s_lshl_b32 s44, s40, 1")
    E("s_add_u32 s44, s44, s34")
    E("s_lshl_b32 s44, s44, 6")
    E("s_add_u32 s45, s45, s44")
    E("s_add_u32 s45, s45, 2048")
    for bn in range(2):
        cg = ACC + (0 * 2 + bn) * 16
        cu = ACC + (1 * 2 + bn) * 16
        for gp in range(2):
            G = ET + 16 * gp
            for q in range(2):
                gg = gp * 2 + q
                T = G + 4 * q
                for r in range(0, 4, 2):
                    E(f"v_pk_mul_f32 v[{T+r}:{T+r+1}], v[{cg+4*gg+r}:{cg+4*gg+r+1}], v[{cg+4*gg+r}:{cg+4*gg+r+1}]")
            for q in range(2):
                T = G + 4 * q
                for r in range(0, 4, 2):
                    E(f"v_pk_fma_f32 v[{T+r}:{T+r+1}], v[{T+r}:{T+r+1}], s[46:47], v[14:15]")
            for q in range(2):
                gg = gp * 2 + q
                T = G + 4 * q
                for r in range(0, 4, 2):
                    E(f"v_pk_mul_f32 v[{T+r}:{T+r+1}], v[{T+r}:{T+r+1}], v[{cg+4*gg+r}:{cg+4*gg+r+1}]")
            for r in range(8):
                E(f"v_exp_f32 v{G+r}, v{G+r}")
            for r in range(0, 8, 2):
                E(f"v_pk_add_f32 v[{G+r}:{G+r+1}], v[{G+r}:{G+r+1}], s[54:55]")
            for r in range(8):
                E(f"v_rcp_f32 v{G+r}, v{G+r}")
            for q in range(2):
                gg = gp * 2 + q
                T = G + 8 + 4 * q
                for r in range(0, 4, 2):
                    E(f"v_pk_mul_f32 v[{T+r}:{T+r+1}], v[{cg+4*gg+r}:{cg+4*gg+r+1}], v[{cu+4*gg+r}:{cu+4*gg+r+1}]")
            for r in range(0, 8, 2):
                E(f"v_pk_mul_f32 v[{G+r}:{G+r+1}], v[{G+r}:{G+r+1}], v[{G+8+r}:{G+8+r+1}]")
            for q in range(2):
                gg = gp * 2 + q
                t = G + 8 + 2 * q
                E(f"v_cvt_pk_bf16_f32 v{t}, v{G+4*q}, v{G+4*q+1}")
                E(f"v_cvt_pk_bf16_f32 v{t+1}, v{G+4*q+2}, v{G+4*q+3}")
                E(f"v_xor_b32 v{G+12+q}, {gg<<4}, v7")
                E(f"ds_write_b64 v{G+12+q}, v[{t}:{t+1}] offset:{bn*2048}")
    E("s_waitcnt lgkmcnt(0)")
    for i in range(4):
        E(f"ds_read_b128 v[{ET+4*i}:{ET+4*i+3}], v8 offset:{i*1024}")
    for i in range(4):
        E(f"s_waitcnt lgkmcnt({3-i})")
        E(f"buffer_store_dwordx4 v[{ET+4*i}:{ET+4*i+3}], v9, s[16:19], s45 offen")
        E(f"s_add_u32 s45, s45, {16*LDZ}")
    E("s_add_u32 s50, s50, 1")
    E("s_cmp_lt_u32 s50, s48")
    E("s_cbranch_scc1 L_s1c_tile")
    E("s_waitcnt vmcnt(0)")
    dstamp(1, 9, 128)
    rt_end(0)
    E("s_endpgm")

    L = 8
    E("L_s1_loader:")
    E("s_sub_u32 s3, s3, 4")
    E("s_lshl_b32 s28, s3, 12")
    E(f"s_cmp_ge_u32 s2, {NBIG}")
    E("s_cbranch_scc1 L_s1l_small")
    s1_big_tile()
    E("s_lshl_b32 s42, s41, 8")
    E("s_lshl_b32 s43, s3, 14")
    E("s_add_u32 s42, s42, s43")
    E(f"s_add_u32 s43, s42, {XN_OFF}")
    add64(38, "s4", "s5", "s43")
    E(f"s_sub_u32 s43, {XN_SZ}, s42")
    srd(8, "s38", "s39", "s43")
    E("s_cmp_ge_u32 s40, 16")
    E("s_cselect_b32 s6, s32, s6")
    E("s_cselect_b32 s7, s33, s7")
    E("s_and_b32 s45, s40, 15")
    E("s_lshl_b32 s42, s45, 7")
    E("s_lshl_b32 s43, s3, 5")
    E("s_add_u32 s42, s42, s43")
    E("s_lshl_b32 s42, s42, 12")
    add64(38, "s6", "s7", "s42")
    E(f"s_sub_u32 s43, {S_*S_*2}, s42")
    srd(12, "s38", "s39", "s43")
    dma_setup_nt(4096)
    dma_setup_tr256(1024)
    grp = [("s[8:11]", "s24", "s28", 0, VOFA), ("s[12:15]", "s25", "s28", 16384, VOFF)]
    seq = korder()

    def big_issue(stage):
        dq, j = seq[stage]
        E(f"s_add_u32 s24, s41, {dq}")
        E("s_and_b32 s24, s24, 3")
        E("s_lshl_b32 s24, s24, 3")
        E(f"s_add_u32 s24, s24, {j}")
        E("s_lshl_b32 s25, s24, 7")
        E("s_lshl_b32 s24, s24, 16")
        gb.dma(stage % NS, grp)

    for st in range(NS - 1):
        big_issue(st)
    for k in range(32):
        vm = (min(k + NS - 2, 31) - k) * L
        E(f"s_waitcnt vmcnt({vm})")
        E("s_barrier")
        if k + NS - 1 < 32:
            big_issue(k + NS - 1)
    E("s_endpgm")

    def small_srds():
        s1_small_tile("s50")
        E("s_lshr_b32 s42, s3, 1")
        E("s_cmp_eq_u32 s42, 1")
        E("s_cselect_b32 s60, s58, s56")
        E("s_cselect_b32 s61, s59, s57")
        E("s_and_b32 s42, s3, 1")
        E(f"s_mul_i32 s42, s42, {32*LDW}")
        E("s_lshl_b32 s43, s40, 7")
        E("s_add_u32 s42, s42, s43")
        add64(38, "s60", "s61", "s42")
        E(f"s_sub_u32 s43, {D_*LDW}, s42")
        srd(8, "s38", "s39", "s43")
        E("s_lshl_b32 s42, s41, 7")
        E("s_lshl_b32 s43, s3, 5")
        E("s_add_u32 s42, s42, s43")
        E("s_lshl_b32 s42, s42, 10")
        E(f"s_add_u32 s43, s42, {XN_OFF}")
        add64(38, "s4", "s5", "s43")
        E(f"s_sub_u32 s43, {XN_SZ}, s42")
        srd(12, "s38", "s39", "s43")
        E("s_mov_b32 s24, 0")
        E("s_mov_b32 s25, 0")

    def small_issue(slot):
        gs.dma(slot, grp)
        E(f"s_add_u32 s24, s24, {64*LDW}")
        E("s_add_u32 s25, s25, 128")

    E("L_s1l_small:")
    E("s_mov_b32 s50, 0")
    small_srds()
    dma_setup_nt(1024)
    dma_setup_tr128(LDW)
    for st in range(NS - 1):
        small_issue(st)
    E("s_lshl_b32 s26, s48, 1")
    E("s_sub_u32 s26, s26, 1")
    E("L_s1l_small_loop:")
    for s in range(NS):
        E(f"s_waitcnt vmcnt({(NS-2)*L})")
        E("s_barrier")
        if s == 1:
            E("s_cmp_lt_u32 s25, 1024")
            E("s_cbranch_scc1 L_s1l_same")
            E("s_add_u32 s50, s50, 1")
            small_srds()
            E("L_s1l_same:")
        small_issue((s + NS - 1) % NS)
    E("s_sub_u32 s26, s26, 1")
    E("s_cmp_lg_u32 s26, 0")
    E("s_cbranch_scc1 L_s1l_small_loop")
    E(f"s_waitcnt vmcnt({2*L})")
    E("s_barrier")
    small_issue(3)
    E(f"s_waitcnt vmcnt({2*L})")
    E("s_barrier")
    E(f"s_waitcnt vmcnt({L})")
    E("s_barrier")
    E("s_waitcnt vmcnt(0)")
    E("s_barrier")
    E("L_s1_done:")
    E("s_endpgm")


NST2 = 256


def gen_stage2():
    E(".p2align 8")
    E(".globl stage2_kernel")
    E(".type stage2_kernel,@function")
    E("stage2_kernel:")
    dstamp(2, 4)
    E(f"s_cmp_ge_u32 s2, {NST2}")
    E("s_cbranch_scc1 L_s2_done")
    E("s_load_dwordx2 s[4:5], s[0:1], 88")
    E("s_load_dwordx2 s[6:7], s[0:1], 0")
    E("s_load_dwordx2 s[32:33], s[0:1], 72")
    wave_ids()
    E("s_and_b32 s40, s2, 7")
    E("s_lshr_b32 s41, s2, 6")
    E("s_lshl_b32 s41, s41, 3")
    E("s_add_u32 s40, s40, s41")
    E("s_lshr_b32 s41, s2, 3")
    E("s_and_b32 s41, s41, 7")
    E("s_waitcnt lgkmcnt(0)")
    g = Gemm(1, 1, 2, "nt")
    NSTEP = KZ // 128
    PD = 3
    E("s_cmp_ge_u32 s3, 4")
    E("s_cbranch_scc1 L_s2_loader")
    E("s_lshr_b32 s34, s3, 1")
    E("s_and_b32 s35, s3, 1")
    E("s_lshl_b32 s36, s34, 5")
    E("s_lshl_b32 s37, s35, 5")
    srd(20, "s6", "s7", XN_SZ)
    srd(16, "s32", "s33", XN_SZ)
    E("s_lshl_b32 s45, s40, 6")
    E("s_add_u32 s45, s45, s37")
    E("s_lshl_b32 s45, s45, 10")
    E("s_lshl_b32 s44, s41, 6")
    E("s_add_u32 s44, s44, s36")
    E("s_lshl_b32 s44, s44, 1")
    E("s_add_u32 s45, s45, s44")
    E("s_add_u32 s46, s45, 16384")
    E("v_lshrrev_b32 v2, 2, v1")
    E("v_lshlrev_b32 v2, 10, v2")
    E("v_and_b32 v3, 3, v1")
    E("v_lshlrev_b32 v3, 4, v3")
    E("v_add_u32 v9, v2, v3")
    E(f"buffer_load_dwordx4 v[{ET}:{ET+3}], v9, s[20:23], s45 offen")
    E(f"buffer_load_dwordx4 v[{ET+4}:{ET+7}], v9, s[20:23], s46 offen")
    frag_setup_nt(VA, "s36")
    frag_setup_nt(VB, "s37")
    E("s_lshl_b32 s49, s3, 13")
    E(f"s_add_u32 s49, s49, {STG_OFF}")
    g.zero_acc()
    E("s_barrier")
    for u in range(PD):
        g.reads(0, u, u)
    for k in range(NSTEP):
        g.cons_step(k % NS, PD, "always" if k < NSTEP - 1 else None)
    E("s_nop 15")
    E("v_and_b32 v2, 31, v1")
    E("v_lshrrev_b32 v3, 1, v2")
    E("v_and_b32 v3, 7, v3")
    E("v_lshrrev_b32 v4, 5, v1")
    E("v_xor_b32 v3, v3, v4")
    E("v_lshlrev_b32 v3, 4, v3")
    E("v_lshlrev_b32 v2, 7, v2")
    E("v_add_u32 v2, v2, v3")
    E("v_add_u32 v2, s49, v2")
    for gg in range(4):
        E(f"v_xor_b32 v4, {gg<<5}, v2")
        E(f"ds_write_b128 v4, v[{ACC+4*gg}:{ACC+4*gg+3}]")
    E("v_lshrrev_b32 v2, 2, v1")
    E("v_and_b32 v3, 3, v1")
    E("v_lshlrev_b32 v3, 1, v3")
    E("v_lshrrev_b32 v4, 3, v1")
    E("v_xor_b32 v3, v3, v4")
    E("v_lshlrev_b32 v3, 4, v3")
    E("v_lshlrev_b32 v2, 7, v2")
    E("v_add_u32 v2, v2, v3")
    E("v_add_u32 v2, s49, v2")
    E("v_xor_b32 v3, 16, v2")
    E("s_waitcnt lgkmcnt(0)")
    R = ET + 8
    for i in range(2):
        E(f"ds_read_b128 v[{R+8*i}:{R+8*i+3}], v2 offset:{i*2048}")
        E(f"ds_read_b128 v[{R+8*i+4}:{R+8*i+7}], v3 offset:{i*2048}")
    E("s_waitcnt vmcnt(0) lgkmcnt(0)")
    for i in range(2):
        for j in range(4):
            x = ET + 4 * i + j
            E(f"v_lshlrev_b32 v4, 16, v{x}")
            E(f"v_and_b32 v5, 0xffff0000, v{x}")
            E(f"v_add_f32 v4, v4, v{R+8*i+2*j}")
            E(f"v_add_f32 v5, v5, v{R+8*i+2*j+1}")
            E(f"v_cvt_pk_bf16_f32 v{x}, v4, v5")
        E(f"buffer_store_dwordx4 v[{ET+4*i}:{ET+4*i+3}], v9, s[16:19], {'s45' if i == 0 else 's46'} offen")
    E("s_waitcnt vmcnt(0)")
    dstamp(2, 5)
    rt_end(1)
    E("s_endpgm")
    E("L_s2_loader:")
    E("s_sub_u32 s3, s3, 4")
    E("s_lshr_b32 s34, s3, 1")
    E("s_and_b32 s35, s3, 1")
    E("s_lshl_b32 s28, s3, 13")
    E(f"s_mul_i32 s42, s41, {64*LDZ}")
    E(f"s_add_u32 s42, s42, {V_OFF}")
    E(f"s_sub_u32 s46, {V_OFF + V_SZ}, s42")
    E(f"s_mul_i32 s43, s40, {64*LDZ}")
    E(f"s_add_u32 s43, s43, {Z_OFF}")
    E(f"s_sub_u32 s47, {Z_OFF + Z_SZ}, s43")
    E("s_cmp_eq_u32 s34, 1")
    E("s_cselect_b32 s42, s43, s42")
    E("s_cselect_b32 s46, s47, s46")
    add64(38, "s4", "s5", "s42")
    srd(8, "s38", "s39", "s46")
    E("s_lshl_b32 s24, s35, 7")
    E(f"s_add_u32 s25, s24, {32*LDZ}")
    dma_setup_nt(LDZ)
    grp = [("s[8:11]", "s24", "s28", 0, VOFF), ("s[8:11]", "s25", "s28", 4096, VOFF)]
    L = 8

    def issue(stage):
        g.dma(stage % NS, grp)
        E("s_add_u32 s24, s24, 256")
        E("s_add_u32 s25, s25, 256")

    for st in range(NS - 1):
        issue(st)
    for k in range(NSTEP):
        vm = (min(k + NS - 2, NSTEP - 1) - k) * L
        E(f"s_waitcnt vmcnt({vm})")
        E("s_barrier")
        if k + NS - 1 < NSTEP:
            issue(k + NS - 1)
    E("L_s2_done:")
    E("s_endpgm")


def desc(name, vgpr, sgpr):
    E(".p2align 6")
    E(f".amdhsa_kernel {name}")
    E(f"  .amdhsa_next_free_vgpr {vgpr}")
    E(f"  .amdhsa_next_free_sgpr {sgpr}")
    E(f"  .amdhsa_accum_offset {(vgpr+3)//4*4}")
    E("  .amdhsa_group_segment_fixed_size 0")
    E("  .amdhsa_kernarg_size 96")
    E("  .amdhsa_user_sgpr_count 2")
    E("  .amdhsa_user_sgpr_kernarg_segment_ptr 1")
    E("  .amdhsa_system_sgpr_workgroup_id_x 1")
    E("  .amdhsa_float_denorm_mode_32 3")
    E(".end_amdhsa_kernel")


def main():
    hdr = open(f"cdna_kernels/{NAME}.s.ref").read().split("\n")
    for line in hdr:
        if line.startswith(";") and "@launch" not in line and "Override launch" not in line and "grid=ceil" not in line:
            E(line)
        elif not line.startswith(";"):
            break
    E(f"; @launch kernel=prep_kernel grid=({NPREP},1,1) block=(256,1,1) lds=16384")
    E(f"; @launch kernel=stage1_kernel grid=({NST1},1,1) block=(512,1,1) lds={NS*STAGE+32768}")
    E(f"; @launch kernel=stage2_kernel grid=({NST2},1,1) block=(512,1,1) lds={NS*STAGE+32768}")
    E('.amdgcn_target "amdgcn-amd-amdhsa--gfx950"')
    E(".text")
    gen_prep()
    gen_stage1()
    gen_stage2()
    E('.section .rodata,"a"')
    desc("prep_kernel", 200, 100)
    desc("stage1_kernel", 200, 100)
    desc("stage2_kernel", 200, 100)
    open(os.environ.get("OUT", f"cdna_kernels/{NAME}.s"), "w").write("\n".join(out) + "\n")


if __name__ == "__main__":
    main()
```
